```python
import torch

def _softmax(x, axis=-1):
    return torch.softmax(x, dim=axis)
def _gelu(x):
    return torch.nn.functional.gelu(x, approximate="tanh")
def _silu(x):
    return torch.nn.functional.silu(x)
def _sigmoid(x):
    return torch.sigmoid(x)
def _layernorm(x, axis=-1, eps=1e-5):
    m = x.mean(dim=axis, keepdim=True)
    v = x.var(dim=axis, keepdim=True, unbiased=False)
    return (x - m) / torch.sqrt(v + eps)
def _scatter_add(tgt, idx, src, axis=0):
    return tgt.clone().index_add_(axis, idx, src)
def _segment_sum(src, seg, n):
    out = torch.zeros((n,) + src.shape[1:], dtype=src.dtype)
    return out.index_add_(0, seg, src)
def _pad(x, pw):
    flat = tuple(v for pair in reversed(pw) for v in pair)
    return torch.nn.functional.pad(x, flat)

kernel_name = 'sequential_preLN__sliding_block_cached__glu_gated_bilinear__decode'

def setup_inputs():

    _w = (lambda a: (lambda t: t.to(torch.bfloat16) if t.is_floating_point() else t)(torch.as_tensor(a)))
    def _A_setup():
        B, Sq, D = 4, 1, 512
        Hq, Hkv, Sk, Dh = 32, 32, 4096, 128
        assert Hq % Hkv == 0, (Hq, Hkv)
        return {
            "x": _w((lambda *s: torch.randn(*s, dtype=torch.bfloat16) * 0.05)(B, Sq, D)),
            "k_cache": _w((lambda *s: torch.randn(*s, dtype=torch.bfloat16) * 1.6)(B, Hkv, Sk, Dh)),
            "v_cache": _w((lambda *s: torch.randn(*s, dtype=torch.bfloat16) * 0.8)(B, Hkv, Sk, Dh)),
            "wq": _w((lambda *s: torch.randn(*s, dtype=torch.bfloat16) * 1.6)(D, Hq * Dh) * (D ** -0.5)),
            "wo": _w((lambda *s: torch.randn(*s, dtype=torch.bfloat16) * 0.8)(Hq * Dh, D) * ((Hq * Dh) ** -0.5)),
        }
    _A_in = _A_setup()

    def _B_setup():
        B, S, D, F = 4, 1, 512, 1376
        return {
            "x": _w((lambda *s: torch.randn(*s, dtype=torch.bfloat16) * 0.05)(B, S, D)),
            "w_gate": _w((lambda *s: torch.randn(*s, dtype=torch.bfloat16) * 0.4)(D, F) * (D ** -0.5)),
            "w_up": _w((lambda *s: torch.randn(*s, dtype=torch.bfloat16) * 0.4)(D, F) * (D ** -0.5)),
            "w_down": _w((lambda *s: torch.randn(*s, dtype=torch.bfloat16) * 0.4)(F, D) * (F ** -0.5)),
        }
    _B_in = _B_setup()

    return {
        "A_x": _A_in["x"],
        "A_k_cache": _A_in["k_cache"],
        "A_v_cache": _A_in["v_cache"],
        "A_wq": _A_in["wq"],
        "A_wo": _A_in["wo"],
        "B_x": _B_in["x"],
        "B_w_gate": _B_in["w_gate"],
        "B_w_up": _B_in["w_up"],
        "B_w_down": _B_in["w_down"],
    }

def reference(A_x, A_k_cache, A_v_cache, A_wq, A_wo, B_x, B_w_gate, B_w_up, B_w_down):
    def _A_ref(x, k_cache, v_cache, wq, wo):
        B, Sq, D = x.shape
        Hq, Dh = 32, 128
        Hkv, Sk = k_cache.shape[1], k_cache.shape[2]
        W = min(4096, max(256, Sk // 4))
        rep = Hq // Hkv
        q = (lambda x, *d: x.permute(*d))((x @ wq).reshape(B, Sq, Hq, Dh), 0, 2, 1, 3)
        k = (lambda x, n, axis: torch.repeat_interleave(x, n, dim=axis))(k_cache[:, :, Sk - W:, :], rep, axis=1)
        v = (lambda x, n, axis: torch.repeat_interleave(x, n, dim=axis))(v_cache[:, :, Sk - W:, :], rep, axis=1)
        scores = torch.einsum("bhqd,bhkd->bhqk", q, k) * (Dh ** -0.5)
        p = _softmax(scores, axis=-1)
        o = torch.einsum("bhqk,bhkd->bhqd", p, v)
        return (lambda x, *d: x.permute(*d))(o, 0, 2, 1, 3).reshape(B, Sq, Hq * Dh) @ wo

    def _B_ref(x, w_gate, w_up, w_down):
        g = torch.einsum("bsd,df->bsf", x, w_gate)
        u = torch.einsum("bsd,df->bsf", x, w_up)
        h = g * u
        return torch.einsum("bsf,fd->bsd", h, w_down)

    x = A_x
    h = x + _A_ref(_layernorm(x, axis=-1), A_k_cache, A_v_cache, A_wq, A_wo)
    h2 = h + _B_ref(_layernorm(h, axis=-1), B_w_gate, B_w_up, B_w_down)
    return h2
```

```python
import re

TRANS = ("v_exp_f32", "v_log_f32", "v_rcp_f32", "v_rsq_f32", "v_sqrt_f32", "v_sin_f32", "v_cos_f32")


def split_ops(s):
    out, depth, cur = [], 0, ""
    for ch in s:
        if ch == "[":
            depth += 1
        if ch == "]":
            depth -= 1
        if ch == "," and depth == 0:
            out.append(cur.strip()); cur = ""
        else:
            cur += ch
    if cur.strip():
        out.append(cur.strip())
    return out


def regs_of(tok):
    tok = tok.strip()
    tok = tok.lstrip("-|").rstrip("|")
    m = re.fullmatch(r"([vs])(\d+)", tok)
    if m:
        return {(m.group(1), int(m.group(2)))}
    m = re.fullmatch(r"([vs])\[(\d+):(\d+)\]", tok)
    if m:
        return {(m.group(1), i) for i in range(int(m.group(2)), int(m.group(3)) + 1)}
    if tok in ("vcc", "vcc_lo", "vcc_hi"):
        return {("vcc", 0)}
    if tok in ("exec", "exec_lo", "exec_hi"):
        return {("exec", 0)}
    if tok == "m0":
        return {("m0", 0)}
    return set()


class Ins:
    def __init__(self, text):
        self.text = text
        t = text.split(";")[0].strip()
        self.label = None
        self.kind = "ins"
        if not t:
            self.kind = "none"; return
        if t.endswith(":"):
            self.kind = "label"; self.label = t[:-1]; return
        if t.startswith("."):
            self.kind = "none"; return
        parts = t.split(None, 1)
        self.mn = parts[0]
        rest = parts[1] if len(parts) > 1 else ""
        ops = split_ops(rest)
        self.mods = ""
        if ops:
            last = ops[-1].split()
            ops[-1] = last[0]
            self.mods = " ".join(last[1:])
        self.ops = ops
        mn = self.mn
        self.mfma = mn.startswith("v_mfma") or mn.startswith("v_smfmac")
        self.valu = mn.startswith("v_") and not self.mfma
        self.trans = any(mn.startswith(x) for x in TRANS)
        self.dot = mn.startswith("v_dot")
        self.dpp = mn.endswith("_dpp") or bool(re.search(r"(row_|quad_perm|wave_sh|wave_ro|row_bcast|row_newbcast)", self.mods))
        self.permlane = mn.startswith("v_permlane")
        self.readlane = mn.startswith("v_readlane") or mn.startswith("v_readfirstlane")
        self.vmem = mn.startswith("buffer_") or mn.startswith("global_") or mn.startswith("flat_")
        self.ds = mn.startswith("ds_")
        self.salu = mn.startswith("s_")
        self.branch = mn.startswith("s_cbranch") or mn == "s_branch"
        self.uncond = mn in ("s_branch", "s_endpgm", "s_setpc_b64")
        self.target = ops[0] if self.branch else None
        self.states = 1
        if mn == "s_nop":
            self.states = int(ops[0], 0) + 1
        R = [regs_of(o) for o in ops]
        self.wr = set(); self.rd = set()
        self.srcC = set(); self.srcAB = set(); self.stdata = set()
        U = lambda xs: set().union(*xs) if xs else set()
        if self.mfma:
            self.wr = R[0]; self.srcAB = R[1] | R[2]; self.srcC = R[3]; self.rd = self.srcAB | self.srcC
        elif self.valu:
            base = re.sub(r"_(e32|e64|dpp|sdwa)$", "", mn)
            if self.permlane and "swap" in mn:
                self.wr = R[0] | R[1]; self.rd = R[0] | R[1]
            elif base.startswith("v_cmp"):
                self.wr = R[0]; self.rd = U(R[1:])
            elif base in ("v_add_co_u32", "v_sub_co_u32", "v_subrev_co_u32"):
                self.wr = R[0] | R[1]; self.rd = U(R[2:])
            elif base in ("v_addc_co_u32", "v_subb_co_u32"):
                self.wr = R[0] | R[1]; self.rd = U(R[2:])
            elif base == "v_nop":
                pass
            else:
                self.wr = R[0]; self.rd = U(R[1:])
                if base.startswith("v_fmac") or base.startswith("v_mac") or base.startswith("v_dot2c") or base.startswith("v_pk_fmac") \
                        or base.startswith("v_writelane") or self.dpp:
                    self.rd |= R[0]
                if base == "v_cndmask_b32" and len(ops) == 3:
                    self.rd |= {("vcc", 0)}
            if self.dot:
                if base.startswith("v_dot2c"):
                    self.srcC = R[0]; self.srcAB = R[1] | R[2]
                else:
                    self.srcAB = R[1] | R[2]; self.srcC = R[3]
        elif self.vmem:
            if "_load" in mn:
                self.wr = R[0]; self.rd = U(R[1:])
                if "lds" in self.mods.split():
                    self.wr = set(); self.rd = U(R)
            elif "atomic" in mn:
                self.rd = U(R)
                if re.search(r"\b(glc|sc0)\b", self.mods):
                    self.wr = R[0]
            else:
                self.rd = U(R)
                if mn.startswith("buffer_store"):
                    data = R[0]
                else:
                    data = R[1]
                if "x3" in mn or "x4" in mn:
                    self.stdata = data
        elif self.ds:
            if mn.startswith("ds_read") or mn.startswith("ds_bpermute") or mn.startswith("ds_permute") or mn.startswith("ds_swizzle") or "_rtn" in mn:
                self.wr = R[0]; self.rd = U(R[1:])
            else:
                self.rd = U(R)
        elif self.salu:
            nodst = ("s_cmp", "s_cbranch", "s_branch", "s_waitcnt", "s_nop", "s_barrier", "s_endpgm", "s_setprio", "s_sleep", "s_bitcmp", "s_setpc")
            if any(mn.startswith(x) for x in nodst):
                self.rd = U(R)
            else:
                self.wr = R[0] if R else set(); self.rd = U(R[1:])
                if "saveexec" in mn:
                    self.wr |= {("exec", 0)}; self.rd |= {("exec", 0)}


def vg(s):
    return {r for r in s if r[0] == "v"}


def sg(s):
    return {r for r in s if r[0] in ("s", "vcc")}


def need(P, C):
    n = 0
    if P.valu:
        w = vg(P.wr)
        if w:
            if C.valu and C.dpp and (w & C.rd):
                n = max(n, 2)
            if C.permlane and (w & C.rd):
                n = max(n, 2)
            if C.readlane and (w & C.rd):
                n = max(n, 1)
            if P.trans and (w & C.rd) and not (C.valu and C.trans):
                n = max(n, 1)
            if C.mfma and (w & C.rd):
                n = max(n, 3 if P.dot else 2)
            if P.dot:
                base = lambda x: re.sub(r"_(e32|e64|dpp|sdwa)$", "", x.mn)
                if C.dot and base(C) == base(P):
                    if w & C.srcAB:
                        n = max(n, 3)
                elif (C.valu or C.vmem or C.ds) and (w & (C.rd | C.wr)):
                    n = max(n, 3)
        s = sg(P.wr)
        if s:
            if C.valu and (s & C.rd):
                n = max(n, 4 if (C.mn.startswith("v_readlane") or C.mn.startswith("v_writelane")) else 2)
            if C.vmem and (s & C.rd):
                n = max(n, 5)
    if P.mfma:
        d = P.wr
        if C.mfma:
            if d & C.srcAB:
                n = max(n, 8)
            if d & C.srcC and C.srcC != d:
                n = max(n, 6)
        elif (C.valu or C.vmem or C.ds) and (d & (C.rd | C.wr)):
            n = max(n, 8)
        if C.valu and (vg(P.srcC) & C.wr):
            n = max(n, 3)
    if P.vmem and P.stdata:
        if C.valu and (P.stdata & C.wr):
            n = max(n, 2)
        elif (C.vmem or C.ds or C.mfma) and (P.stdata & C.wr):
            n = max(n, 1)
    return n


MAXW = 9


def fix_hazards(lines):
    ins = [Ins(l) for l in lines]
    changed = True
    total = 0
    while changed:
        changed = False
        labels = {}
        for i, x in enumerate(ins):
            if x.kind == "label":
                labels[x.label] = i
        br = {}
        for i, x in enumerate(ins):
            if x.kind == "ins" and x.branch:
                br.setdefault(labels[x.target], []).append(i)

        def back(i, dist, C, seen):
            worst = 0
            j = i - 1
            while j >= 0 and dist < MAXW:
                x = ins[j]
                if x.kind == "label":
                    for b in br.get(j, []):
                        key = (b, dist)
                        if key in seen:
                            continue
                        seen.add(key)
                        worst = max(worst, back(b, dist + 1, C, seen))
                elif x.kind == "ins":
                    if x.uncond:
                        return worst
                    worst = max(worst, need(x, C) - dist)
                    dist += x.states
                j -= 1
            return worst

        out = []
        i = 0
        while i < len(ins):
            C = ins[i]
            if C.kind == "ins" and C.mn != "s_nop":
                k = back(i, 0, C, set())
                if k > 0:
                    nop = Ins(f"  s_nop {k-1}")
                    ins.insert(i, nop)
                    total += k
                    changed = True
                    break
            i += 1
    return [x.text for x in ins], total


class Asm:
    def __init__(self):
        self.lines = []
        self.nlab = 0

    def __call__(self, s):
        for l in s.split("\n"):
            l = l.rstrip()
            if l.strip():
                self.lines.append(l if l.strip().endswith(":") else "  " + l.strip())

    def label(self, name):
        self.lines.append(name + ":")

    def newlabel(self, base):
        self.nlab += 1
        return f"L_{base}_{self.nlab}"

    def finish(self):
        out, n = fix_hazards(self.lines)
        return out, n
```

```python
import sys
from asmlib import Asm

NAME = "sequential_preLN__sliding_block_cached__glu_gated_bilinear__decode"
OPT = dict(stamps=0, stop=99, kbar=0, spin_lds=200000, spin_g=40000, vgate=1, pre=1, kprio=0)
for a in sys.argv[2:]:
    k, v = a.split("=")
    OPT[k] = int(v, 0)

G_Q, G_ML, G_O, G_A, G_H, G_HH = 0x10000, 0x90000, 0xA0000, 0xC0000, 0x100000, 0x104000
WS_BYTES = 0x200000
STAMP_OFF = 0x10000000
F_Q, F_P, F_O, F_VI, F_T2, F_T3, F_KI, F_S1 = 0, 16, 32, 36, 40, 44, 48, 52
L_Q, L_ML, L_STAT, L_P, L_O, L_RED, L_H = 0x100, 0x200, 0x240, 0x300, 0x800, 0x1000, 0x1800
LDS_BYTES = 8192
S_X, S_K, S_V, S_WQ, S_WO, S_WG, S_WU, S_WD, S_OUT, S_WS = 4, 6, 8, 10, 12, 16, 18, 20, 22, 26
S_H, S_JW, S_B, S_HALF = 28, 29, 30, 31
S_TB = 32
S_T, S_T16L, S_T16H, S_EP = 36, 37, 38, 39
SRD_ST, SRD_WS, SRD_A, SRD_B = 40, 44, 48, 52
S_T0, S_T1, S_CNT, S_T2 = 56, 57, 58, 59
S_SLOT, S_XCD = 60, 61
S_M1, S_M2 = 62, 64
S_SELL, S_SELH, S_ONES = 66, 67, 68
S_ROLE = 69
S_STAMP = 72
NST = 12
S_T3, S_T4 = 70, 71
S_M3 = 96
LOG2E = 0x3FB8AA3B

A = Asm()
e = A


def srd(n):
    return f"s[{n}:{n+3}]"


def vr(a, n):
    return f"v[{a}:{a+n-1}]"


nstamp = [0]


def stamp(k):
    if OPT["stamps"]:
        e(f"s_memrealtime s[{S_STAMP+2*k}:{S_STAMP+2*k+1}]")


def stamp_init():
    if OPT["stamps"]:
        for k in range(2 * NST):
            e(f"s_mov_b32 s{S_STAMP+k}, 0")


def stamp_flush():
    if not OPT["stamps"]:
        return
    e("s_waitcnt lgkmcnt(0) vmcnt(0)")
    e(f"s_add_u32 s{SRD_A}, s{S_WS}, {STAMP_OFF}")
    e(f"s_addc_u32 s{SRD_A+1}, s{S_WS+1}, 0")
    e(f"s_mov_b32 s{SRD_A+2}, 0x100000")
    e(f"s_mov_b32 s{SRD_A+3}, 0x00020000")
    e(f"s_lshl_b32 s{S_T0}, s2, 10")
    e(f"s_lshl_b32 s{S_T1}, s3, 7")
    e(f"s_add_u32 s{S_T0}, s{S_T0}, s{S_T1}")
    e("s_mov_b64 exec, 1")
    e("v_mov_b32 v1, 0")
    for k in range(NST):
        e(f"v_mov_b32 v2, s{S_STAMP+2*k}")
        e(f"v_mov_b32 v3, s{S_STAMP+2*k+1}")
        e(f"buffer_store_dwordx2 v[2:3], v1, {srd(SRD_A)}, s{S_T0} offen offset:{8*k}")
        e("s_nop 1")


def wave_exit():
    stamp_flush()
    e("s_endpgm")


def bf16_round(dst, src, tmp=None):
    e(f"v_cvt_pk_bf16_f32 v{dst}, v{src}, v{src}")
    e(f"v_and_b32 v{dst}, 0xffff0000, v{dst}")


def allreduce_rows(v, t, op="v_add_f32"):
    e(f"v_mov_b32 v{t}, v{v}")
    e(f"v_permlane32_swap_b32 v{v}, v{t}")
    e(f"{op} v{v}, v{v}, v{t}")
    e(f"v_mov_b32 v{t}, v{v}")
    e(f"v_permlane16_swap_b32 v{v}, v{t}")
    e(f"{op} v{v}, v{v}, v{t}")


def dpp(op, d, a, b, ctrl, extra=""):
    bm = "0xf"
    if "bank_mask:" in ctrl:
        ctrl, bm = ctrl.split(" bank_mask:")
    e(f"{op}_dpp v{d}, v{a}, v{b} {ctrl} row_mask:0xf bank_mask:{bm}{extra}")


def lds_wait(off, val, vaddr, vtmp, extra_reads=(), n4=False):
    L = A.newlabel("lw"); D = A.newlabel("lwd")
    e(f"s_mov_b32 s{S_CNT}, {OPT['spin_lds']}")
    A.label(L)
    if n4:
        e(f"ds_read_b128 {vr(vtmp,4)}, v{vaddr} offset:{off}")
    else:
        e(f"ds_read_b32 v{vtmp}, v{vaddr} offset:{off}")
    for x in extra_reads:
        e(x)
    e("s_waitcnt lgkmcnt(0)")
    if n4:
        e(f"v_and_b32 v{vtmp}, v{vtmp}, v{vtmp+1}")
        e(f"v_and_b32 v{vtmp+2}, v{vtmp+2}, v{vtmp+3}")
        e(f"v_and_b32 v{vtmp}, v{vtmp}, v{vtmp+2}")
    e(f"v_readfirstlane_b32 s{S_T0}, v{vtmp}")
    e(f"s_cmp_eq_u32 s{S_T0}, {val}")
    e(f"s_cbranch_scc1 {D}")
    e(f"s_sub_u32 s{S_CNT}, s{S_CNT}, 1")
    e(f"s_cbranch_scc0 {L}")
    A.label(D)


def gpoll(loads, check, between=None):
    L = A.newlabel("gp"); D = A.newlabel("gpd")
    e(f"s_mov_b32 s{S_CNT}, {OPT['spin_g']}")
    first = True
    if between is not None:
        for x in loads:
            e(x)
        between()
        e("s_waitcnt vmcnt(0)")
        check()
        e(f"s_cbranch_vccz {D}")
    A.label(L)
    for x in loads:
        e(x)
    e("s_waitcnt vmcnt(0)")
    check()
    e(f"s_cbranch_vccz {D}")
    e(f"s_sub_u32 s{S_CNT}, s{S_CNT}, 1")
    e(f"s_cbranch_scc0 {L}")
    A.label(D)


def check_xor_granules(regs, vacc):
    first = True
    for r in regs:
        for k in range(4):
            e(f"v_xor_b32 v{r+k}, s{S_TB+k}, v{r+k}")
    flat = [r + k for r in regs for k in range(4)]
    e(f"v_or3_b32 v{vacc}, v{flat[0]}, v{flat[1]}, v{flat[2]}")
    i = 3
    while i < len(flat):
        if i + 1 < len(flat):
            e(f"v_or3_b32 v{vacc}, v{vacc}, v{flat[i]}, v{flat[i+1]}"); i += 2
        else:
            e(f"v_or_b32 v{vacc}, v{vacc}, v{flat[i]}"); i += 1
    e(f"v_and_b32 v{vacc}, 0xff, v{vacc}")
    e(f"v_cmp_ne_u32 vcc, 0, v{vacc}")


def tag_granule(r, vff):
    for k in range(4):
        e(f"v_bfi_b32 v{r+k}, v{vff}, s{S_TB+k}, v{r+k}")


def make_tags():
    e(f"s_add_u32 s{S_T}, s{S_EP}, 0x9E3779B9")
    e(f"s_mul_i32 s{S_T}, s{S_T}, 0x01010101")
    e(f"s_and_b32 s{S_TB}, s{S_T}, 0xff")
    e(f"s_bfe_u32 s{S_TB+1}, s{S_T}, 0x80008")
    e(f"s_bfe_u32 s{S_TB+2}, s{S_T}, 0x80010")
    e(f"s_lshr_b32 s{S_TB+3}, s{S_T}, 24")
    e(f"s_and_b32 s{S_T16L}, s{S_T}, 0xffff")
    e(f"s_lshr_b32 s{S_T16H}, s{S_T}, 16")


def lane_gc(vg_, vc):
    e(f"v_lshrrev_b32 v{vg_}, 4, v0")
    e(f"v_and_b32 v{vc}, 15, v0")


def stream_srd(sptr):
    e(f"s_lshl_b32 s{S_T0}, s{S_B}, 5")
    e(f"s_add_u32 s{S_T0}, s{S_T0}, s{S_H}")
    e(f"s_lshl_b32 s{S_T0}, s{S_T0}, 20")
    e(f"s_lshl_b32 s{S_T1}, s{S_HALF}, 17")
    e(f"s_add_u32 s{S_T0}, s{S_T0}, s{S_T1}")
    e(f"s_add_u32 s{S_T0}, s{S_T0}, 0xC0000")
    e(f"s_add_u32 s{SRD_ST}, s{sptr}, s{S_T0}")
    e(f"s_addc_u32 s{SRD_ST+1}, s{sptr+1}, 0")
    e(f"s_mov_b32 s{SRD_ST+2}, 0x20000")
    e(f"s_mov_b32 s{SRD_ST+3}, 0x00020000")
    e(f"s_and_b32 s{S_T2}, s3, 3")
    e(f"s_lshl_b32 s{S_T2}, s{S_T2}, 10")
    e("v_lshlrev_b32 v1, 4, v0")
    e(f"v_add_u32 v1, s{S_T2}, v1")
    e(f"s_lshl_b32 s{S_T1}, s{S_SLOT}, 12")


KD = 128


def finish_ln(vs1, vvar, vm, vrs, vt):
    bf16_round(vm, vs1)
    bf16_round(vt, vvar)
    e(f"v_add_f32 v{vt}, 0x3727C5AC, v{vt}")
    bf16_round(vt, vt)
    e(f"v_sqrt_f32 v{vt}, v{vt}")
    bf16_round(vt, vt)
    e(f"v_rcp_f32 v{vrs}, v{vt}")


def normalize8(src, dst, vm, vrs, t):
    for d in range(4):
        e(f"v_lshlrev_b32 v{t+2*d}, 16, v{src+d}")
        e(f"v_and_b32 v{t+2*d+1}, 0xffff0000, v{src+d}")
    for i in range(8):
        e(f"v_sub_f32 v{t+i}, v{t+i}, v{vm}")
    for d in range(4):
        e(f"v_cvt_pk_bf16_f32 v{dst+d}, v{t+2*d}, v{t+2*d+1}")
    for d in range(4):
        e(f"v_lshlrev_b32 v{t+2*d}, 16, v{dst+d}")
        e(f"v_and_b32 v{t+2*d+1}, 0xffff0000, v{dst+d}")
    for i in range(8):
        e(f"v_mul_f32 v{t+i}, v{t+i}, v{vrs}")
    for d in range(4):
        e(f"v_cvt_pk_bf16_f32 v{dst+d}, v{t+2*d}, v{t+2*d+1}")


e("s_cmp_ge_u32 s2, 0x100")
e("s_cbranch_scc1 L_END")
e("s_load_dwordx16 s[4:19], s[0:1], 0")
e("s_load_dwordx8 s[20:27], s[0:1], 64")
stamp_init()
stamp(0)
e("v_lshrrev_b32 v1, 6, v0")
e("v_and_b32 v0, 63, v0")
e("v_mov_b32 v2, 0")
e("v_readfirstlane_b32 s3, v1")
e("v_lshlrev_b32 v3, 2, v0")
e("ds_write_b32 v3, v2")
e(f"s_and_b32 s{S_XCD}, s2, 7")
e(f"s_lshr_b32 s{S_SLOT}, s2, 3")
e(f"s_lshr_b32 s{S_H}, s{S_SLOT}, 3")
e(f"s_lshl_b32 s{S_T0}, s{S_XCD}, 2")
e(f"s_add_u32 s{S_H}, s{S_H}, s{S_T0}")
e(f"s_and_b32 s{S_JW}, s{S_SLOT}, 7")
e(f"s_lshr_b32 s{S_B}, s{S_JW}, 1")
e(f"s_and_b32 s{S_HALF}, s{S_JW}, 1")
e(f"s_mov_b32 s{S_SELL}, 0x05040100")
e(f"s_mov_b32 s{S_SELH}, 0x07060302")
e(f"s_mov_b32 s{S_ONES}, 0x3F803F80")
e("s_waitcnt lgkmcnt(0)")
e(f"s_load_dword s{S_EP}, s[{S_WS}:{S_WS+1}], 0")
e(f"s_mov_b32 s{SRD_WS}, s{S_WS}")
e(f"s_mov_b32 s{SRD_WS+1}, s{S_WS+1}")
e(f"s_mov_b32 s{SRD_WS+2}, {WS_BYTES}")
e(f"s_mov_b32 s{SRD_WS+3}, 0x00020000")
e("s_cmp_ge_u32 s3, 4")
e("s_cbranch_scc1 L_VSIDE")

stream_srd(S_K)
if OPT["kprio"]:
    e(f"s_setprio {OPT['kprio']}")
if OPT["kbar"] == 0:
    e("s_barrier")
for i in range(32):
    e(f"buffer_load_dwordx4 {vr(KD+4*i,4)}, v1, {srd(SRD_ST)}, s{S_T1} offen nt")
    if i < 31:
        e(f"s_add_u32 s{S_T1}, s{S_T1}, 0x1000")
        e(f"s_and_b32 s{S_T1}, s{S_T1}, 0x1F000")
    if i == OPT["kbar"] - 1:
        e("s_barrier")
e("v_mov_b32 v4, 0")
e("v_mov_b32 v5, 1")
e("s_mov_b64 exec, 1")
e(f"ds_add_u32 v4, v5 offset:{F_KI}")
e("s_mov_b64 exec, -1")
stamp(1)
e("s_waitcnt lgkmcnt(0)")
make_tags()
lane_gc(2, 3)
e("v_lshlrev_b32 v5, 4, v3")
e(f"s_mov_b32 s{S_M1}, 0xAAAAAAAA")
e(f"s_mov_b32 s{S_M1+1}, 0xAAAAAAAA")
e(f"s_mov_b32 s{S_M2}, 0xCCCCCCCC")
e(f"s_mov_b32 s{S_M2+1}, 0xCCCCCCCC")
lds_wait(F_Q, 1, 4, 6, extra_reads=[f"ds_read_b128 v[8:11], v5 offset:{L_Q}"])
stamp(2)


def qk_group(t0, dst):
    R = [KD + 4 * (t0 + t) for t in range(16)]
    for t in range(16):
        e(f"s_waitcnt vmcnt({31 - (t0 + t)})")
        r = R[t]
        e(f"v_dot2_f32_bf16 v{r}, v{r}, v8, 0")
        for k in range(1, 4):
            e(f"v_dot2_f32_bf16 v{r}, v{r+k}, v{8+k}, v{r}")
    for t in range(8):
        dpp("v_add_f32", R[t], R[t], R[t], "row_ror:8 bank_mask:0x3")
    for t in range(8):
        dpp("v_add_f32", R[t], R[t + 8], R[t + 8], "row_ror:8 bank_mask:0xc")
    for t in range(4):
        dpp("v_add_f32", R[t], R[t], R[t], "row_half_mirror bank_mask:0x5")
    for t in range(4):
        dpp("v_add_f32", R[t], R[t + 4], R[t + 4], "row_half_mirror bank_mask:0xa")
    for t in range(4):
        dpp("v_add_f32", R[t], R[t], R[t], "quad_perm:[1,0,3,2]")
    for t in range(4):
        dpp("v_add_f32", R[t], R[t], R[t], "quad_perm:[2,3,0,1]")
    e(f"v_cndmask_b32_e64 v{R[0]}, v{R[0]}, v{R[1]}, s[{S_M1}:{S_M1+1}]")
    e(f"v_cndmask_b32_e64 v{R[2]}, v{R[2]}, v{R[3]}, s[{S_M1}:{S_M1+1}]")
    e(f"v_cndmask_b32_e64 v{dst}, v{R[0]}, v{R[2]}, s[{S_M2}:{S_M2+1}]")


qk_group(0, 12)
qk_group(16, 13)
stamp(3)
e("v_cvt_pk_bf16_f32 v14, v12, v13")
e("v_lshlrev_b32 v12, 16, v14")
e("v_and_b32 v13, 0xffff0000, v14")
e("v_mul_f32 v12, 0x3DB504F3, v12")
e("v_mul_f32 v13, 0x3DB504F3, v13")
e("v_cvt_pk_bf16_f32 v14, v12, v13")
e("v_lshlrev_b32 v12, 16, v14")
e("v_and_b32 v13, 0xffff0000, v14")
e("v_max_f32 v14, v12, v13")
for c in ("row_ror:8", "row_ror:4", "row_ror:2", "row_ror:1"):
    dpp("v_max_f32", 14, 14, 14, c)
allreduce_rows(14, 15, "v_max_f32")
e("v_sub_f32 v12, v12, v14")
e("v_sub_f32 v13, v13, v14")
e(f"v_mul_f32 v12, {LOG2E}, v12")
e(f"v_mul_f32 v13, {LOG2E}, v13")
e("v_exp_f32 v12, v12")
e("v_exp_f32 v13, v13")
e("v_cvt_pk_bf16_f32 v16, v12, v13")
e("v_add_f32 v15, v12, v13")
e(f"s_mul_i32 s{S_T0}, s3, 320")
e("v_mul_u32_u24 v17, 80, v2")
e("v_lshl_add_u32 v17, v3, 2, v17")
e(f"v_add_u32 v17, s{S_T0}, v17")
e(f"ds_write_b32 v17, v16 offset:{L_P}")
for c in ("row_ror:8", "row_ror:4", "row_ror:2", "row_ror:1"):
    dpp("v_add_f32", 15, 15, 15, c)
allreduce_rows(15, 18)
e(f"s_lshl_b32 s{S_T0}, s3, 3")
e(f"v_mov_b32 v17, s{S_T0}")
e(f"s_lshl_b32 s{S_T0}, s3, 2")
e(f"v_mov_b32 v18, s{S_T0}")
e("v_mov_b32 v19, 1")
e("s_mov_b64 exec, 1")
e(f"ds_write_b64 v17, v[14:15] offset:{L_ML}")
e(f"ds_write_b32 v18, v19 offset:{F_P}")
e("s_mov_b64 exec, -1")
stamp(4)
e("s_cmp_lg_u32 s3, 0")
e("s_cbranch_scc1 L_WORKER_K")

e("s_setprio 3")
e("v_mov_b32 v60, 0xff")
lds_wait(F_P, 1, 4, 20, extra_reads=[f"ds_read_b128 v[24:27], v4 offset:{L_ML}", f"ds_read_b128 v[28:31], v4 offset:{L_ML+16}"], n4=True)
e("v_max_f32 v20, v24, v26")
e("v_max_f32 v21, v28, v30")
e("v_max_f32 v20, v20, v21")
for i, r in enumerate((24, 26, 28, 30)):
    e(f"v_sub_f32 v{52+i}, v{r}, v20")
for i in range(4):
    e(f"v_mul_f32 v{52+i}, {LOG2E}, v{52+i}")
for i in range(4):
    e(f"v_exp_f32 v{52+i}, v{52+i}")
e("v_mul_f32 v21, v52, v25")
e("v_fmac_f32 v21, v53, v27")
e("v_fmac_f32 v21, v54, v29")
e("v_fmac_f32 v21, v55, v31")
e(f"v_mov_b32 v22, s{S_T}")
e(f"v_mov_b32 v23, s{S_T}")
e(f"s_lshl_b32 s{S_T0}, s{S_H}, 9")
e(f"s_lshl_b32 s{S_T1}, s{S_JW}, 6")
e(f"s_add_u32 s{S_T0}, s{S_T0}, s{S_T1}")
e(f"s_add_u32 s{S_T0}, s{S_T0}, {G_ML}")
e("s_mov_b64 exec, 1")
e(f"buffer_store_dwordx4 v[20:23], v4, {srd(SRD_WS)}, s{S_T0} offen sc1")
e("s_mov_b64 exec, -1")
e("v_lshrrev_b32 v6, 2, v3")
e("v_and_b32 v7, 3, v3")
e("v_lshlrev_b32 v8, 7, v6")
e(f"s_lshl_b32 s{S_T1}, s{S_H}, 9")
e(f"s_add_u32 s{S_T1}, s{S_T1}, {G_ML}")


def chk_ml():
    e(f"v_xor_b32 v32, s{S_T}, v26")
    e(f"v_xor_b32 v33, s{S_T}, v30")
    e("v_or_b32 v32, v32, v33")
    e("v_cmp_ne_u32 vcc, 0, v32")


gpoll([f"buffer_load_dwordx4 v[24:27], v8, {srd(SRD_WS)}, s{S_T1} offen sc1",
       f"buffer_load_dwordx4 v[28:31], v8, {srd(SRD_WS)}, s{S_T1} offen offset:64 sc1"], chk_ml)
e("v_max_f32 v32, v24, v28")
e("v_sub_f32 v33, v24, v32")
e("v_sub_f32 v34, v28, v32")
e(f"v_mul_f32 v33, {LOG2E}, v33")
e(f"v_mul_f32 v34, {LOG2E}, v34")
e("v_exp_f32 v33, v33")
e("v_exp_f32 v34, v34")
e("v_mul_f32 v35, v33, v25")
e("v_fmac_f32 v35, v34, v29")
e("v_rcp_f32 v35, v35")
e("v_mul_f32 v56, v33, v35")
e("v_mul_f32 v57, v34, v35")
e(f"s_lshl_b32 s{S_ROLE}, s{S_XCD}, 2")
e(f"s_add_u32 s{S_ROLE}, s{S_ROLE}, s{S_SLOT}")
e(f"s_and_b32 s{S_ROLE}, s{S_ROLE}, 31")
e(f"s_mov_b32 s{SRD_B}, s{S_X}")
e(f"s_mov_b32 s{SRD_B+1}, s{S_X+1}")
e(f"s_mov_b32 s{SRD_B+2}, 4096")
e(f"s_mov_b32 s{SRD_B+3}, 0x00020000")
e("v_lshlrev_b32 v9, 10, v6")
e("v_lshl_add_u32 v9, v7, 3, v9")
e("v_lshrrev_b32 v10, 1, v2")
e("v_lshl_add_u32 v9, v10, 2, v9")
e(f"s_lshl_b32 s{S_T0}, s{S_ROLE}, 5")
e(f"buffer_load_dword v58, v9, {srd(SRD_B)}, s{S_T0} offen")
stamp(5)
lds_wait(F_VI, 4, 4, 20)
e(f"s_lshl_b32 s{S_T0}, s{S_H}, 17")
e(f"s_lshl_b32 s{S_T1}, s{S_JW}, 7")
e(f"s_add_u32 s{S_T0}, s{S_T0}, s{S_T1}")
e(f"s_add_u32 s{SRD_A}, s{S_WO}, s{S_T0}")
e(f"s_addc_u32 s{SRD_A+1}, s{S_WO+1}, 0")
e(f"s_sub_u32 s{SRD_A+2}, 0x20000, s{S_T1}")
e(f"s_mov_b32 s{SRD_A+3}, 0x00020000")
e("v_lshlrev_b32 v9, 13, v2")
e("v_lshl_add_u32 v9, v3, 3, v9")
for s in range(4):
    for ee in range(8):
        if ee % 4 == 0:
            e(f"s_mov_b32 s{S_T0}, {s*32768 + (ee>>2)*4096}")
        e(f"buffer_load_dwordx2 {vr(128 + 2*(8*s+ee), 2)}, v9, {srd(SRD_A)}, s{S_T0} offen offset:{(ee&3)*1024}")
e("v_and_b32 v11, 31, v0")
e("v_lshlrev_b32 v11, 4, v11")
e("v_lshlrev_b32 v12, 10, v6")
e("v_lshl_add_u32 v12, v7, 7, v12")
e("v_lshl_add_u32 v12, v2, 5, v12")
e(f"s_lshl_b32 s{S_T3}, s{S_H}, 12")
e(f"s_add_u32 s{S_T3}, s{S_T3}, {G_O}")
e(f"s_lshl_b32 s{S_T4}, s{S_JW}, 9")
e(f"s_add_u32 s{S_T4}, s{S_T4}, s{S_T3}")
e("v_lshlrev_b32 v13, 13, v6")
e("v_lshl_add_u32 v13, v2, 6, v13")
e("v_lshl_add_u32 v13, v7, 4, v13")
stamp(6)
lds_wait(F_O, 4, 4, 20, extra_reads=[f"ds_read_b128 {vr(24+4*w,4)}, v11 offset:{L_O + 512*w}" for w in range(4)])
stamp(7)
for k in range(4):
    e(f"v_mul_f32 v{20+k}, v52, v{24+k}")
for w in range(1, 4):
    for k in range(4):
        e(f"v_fmac_f32 v{20+k}, v{52+w}, v{24+4*w+k}")
tag_granule(20, 60)
e("s_mov_b32 exec_hi, 0")
e(f"buffer_store_dwordx4 v[20:23], v11, {srd(SRD_WS)}, s{S_T4} offen sc1")
e("s_mov_b32 exec_hi, -1")


def wo_frags():
    e("s_waitcnt vmcnt(5)")
    for s in range(4):
        for t in range(4):
            for d in range(4):
                lo = 128 + 2 * (8 * s + 2 * d) + (t >> 1)
                hi = 128 + 2 * (8 * s + 2 * d + 1) + (t >> 1)
                e(f"v_perm_b32 v{192 + 16*s + 4*t + d}, v{hi}, v{lo}, s{S_SELH if t & 1 else S_SELL}")


gpoll([f"buffer_load_dwordx4 {vr(24+4*i,4)}, v12, {srd(SRD_WS)}, s{S_T3} offen offset:{o} sc1" for i, o in enumerate((0, 16, 512, 528))],
      lambda: check_xor_granules([24, 28, 32, 36], 40), between=wo_frags)
for k in range(8):
    e(f"v_mul_f32 v{24+k}, v56, v{24+k}")
for k in range(8):
    e(f"v_fmac_f32 v{24+k}, v57, v{32+k}")
for d in range(4):
    e(f"v_cvt_pk_bf16_f32 v{40+d}, v{24+2*d}, v{24+2*d+1}")
for s in range(4):
    for t in range(4):
        e(f"v_mfma_f32_16x16x32_bf16 {vr(64 + 16*s + 4*t, 4)}, v[40:43], {vr(192 + 16*s + 4*t, 4)}, 0")
for s in range(1, 4):
    for t in range(4):
        src0 = 64 + 4 * t if s == 1 else 20 + t
        e(f"v_add_f32 v{20+t}, v{src0}, v{64 + 16*s + 4*t + s}")
tag_granule(20, 60)
e(f"s_lshl_b32 s{S_T0}, s{S_JW}, 15")
e(f"s_lshl_b32 s{S_T1}, s{S_H}, 8")
e(f"s_add_u32 s{S_T0}, s{S_T0}, s{S_T1}")
e(f"s_add_u32 s{S_T0}, s{S_T0}, {G_A}")
e(f"buffer_store_dwordx4 v[20:23], v13, {srd(SRD_WS)}, s{S_T0} offen sc1")
e("v_mov_b32 v19, 1")
e(f"ds_write_b32 v4, v19 offset:{F_T2}")
stamp(8)
e(f"s_cmp_ge_u32 s{S_SLOT}, 4")
e("s_cbranch_scc1 L_EXIT0")
e("v_lshlrev_b32 v11, 4, v0")
e(f"s_lshl_b32 s{S_T0}, s{S_ROLE}, 13")
e(f"s_add_u32 s{S_T0}, s{S_T0}, {G_A}")
e(f"s_add_u32 s{S_T1}, s{S_T0}, 4096")
gpoll([f"buffer_load_dwordx4 {vr(128+4*i,4)}, v11, {srd(SRD_WS)}, s{S_T0 if i < 4 else S_T1} offen offset:{(i&3)*1024} sc1" for i in range(8)],
      lambda: check_xor_granules([128 + 4 * i for i in range(8)], 40))
for i in range(4):
    e(f"v_pk_add_f32 {vr(128+8*i,2)}, {vr(128+8*i,2)}, {vr(132+8*i,2)}")
    e(f"v_pk_add_f32 {vr(130+8*i,2)}, {vr(130+8*i,2)}, {vr(134+8*i,2)}")
for i in (0, 2):
    e(f"v_pk_add_f32 {vr(128+8*i,2)}, {vr(128+8*i,2)}, {vr(136+8*i,2)}")
    e(f"v_pk_add_f32 {vr(130+8*i,2)}, {vr(130+8*i,2)}, {vr(138+8*i,2)}")
e("v_pk_add_f32 v[128:129], v[128:129], v[144:145]")
e("v_pk_add_f32 v[130:131], v[130:131], v[146:147]")
e("v_permlane32_swap_b32 v128, v130")
e("v_permlane32_swap_b32 v129, v131")
e("v_add_f32 v128, v128, v130")
e("v_add_f32 v129, v129, v131")
e("v_mov_b32 v130, v128")
e("v_mov_b32 v131, v129")
e("v_permlane16_swap_b32 v128, v130")
e("v_permlane16_swap_b32 v129, v131")
e("v_add_f32 v128, v128, v130")
e("v_add_f32 v129, v129, v131")
e("v_cvt_pk_bf16_f32 v130, v128, v129")
e("v_lshlrev_b32 v128, 16, v130")
e("v_and_b32 v129, 0xffff0000, v130")
e("v_lshlrev_b32 v132, 16, v58")
e("v_and_b32 v133, 0xffff0000, v58")
e("v_add_f32 v128, v128, v132")
e("v_add_f32 v129, v129, v133")
e("v_cvt_pk_bf16_f32 v130, v128, v129")
e(f"v_lshl_or_b32 v132, v130, 16, s{S_T16L}")
e("v_mov_b32 v134, 0xffff")
e(f"v_bfi_b32 v133, v134, s{S_T16H}, v130")
e("v_lshlrev_b32 v11, 11, v6")
e("v_lshl_add_u32 v11, v7, 4, v11")
e("v_lshl_add_u32 v11, v10, 3, v11")
e(f"s_lshl_b32 s{S_T0}, s{S_ROLE}, 6")
e(f"s_add_u32 s{S_T0}, s{S_T0}, {G_H}")
e("s_mov_b32 exec_lo, 0xffff")
e("s_mov_b32 exec_hi, 0xffff")
e(f"buffer_store_dwordx2 v[132:133], v11, {srd(SRD_WS)}, s{S_T0} offen sc1")
e("v_lshlrev_b32 v12, 5, v6")
e("v_lshl_add_u32 v12, v7, 3, v12")
e("v_lshl_add_u32 v12, v10, 2, v12")
e(f"ds_write_b32 v12, v130 offset:{L_H}")
e(f"ds_write_b32 v4, v19 offset:{F_T3}")
e("s_mov_b64 exec, -1")
stamp(9)
e("s_waitcnt lgkmcnt(0)")
A.label("L_EXIT0")
wave_exit()

A.label("L_VSIDE")
e("s_cmp_eq_u32 s3, 4")
e("s_cbranch_scc1 L_S1")
e("s_cmp_eq_u32 s3, 5")
e("s_cbranch_scc1 L_QG")


def v_loads(bar_after=None, gate=True):
    stream_srd(S_V)
    if gate and OPT["vgate"]:
        e("v_mov_b32 v4, 0")
        lds_wait(F_KI, 4, 4, 6)
        e(f"s_lshl_b32 s{S_T1}, s{S_SLOT}, 12")
    e(f"s_xor_b32 s{S_T2}, s{S_T1}, 0x10000")
    for j in range(32):
        so = S_T1 if j % 2 == 0 else S_T2
        e(f"buffer_load_dwordx4 {vr(KD+4*j,4)}, v1, {srd(SRD_ST)}, s{so} offen nt")
        if j % 2 == 1 and j < 31:
            e(f"s_add_u32 s{S_T1}, s{S_T1}, 0x1000")
            e(f"s_and_b32 s{S_T1}, s{S_T1}, 0x1F000")
            e(f"s_xor_b32 s{S_T2}, s{S_T1}, 0x10000")
        if bar_after is not None and j == bar_after - 1:
            e("s_barrier")


e("s_barrier")
if OPT["pre"]:
    e("s_cmp_lg_u32 s3, 6")
    e("s_cbranch_scc1 L_NOPRE")
    e(f"s_getpc_b64 s[{SRD_A}:{SRD_A+1}]")
    A.label("L_PC")
    e(f"s_sub_u32 s{SRD_A}, s{SRD_A}, L_PC-{NAME}_kernel")
    e(f"s_subb_u32 s{SRD_A+1}, s{SRD_A+1}, 0")
    e(f"s_mov_b32 s{SRD_A+2}, L_CODE_END-{NAME}_kernel")
    e(f"s_mov_b32 s{SRD_A+3}, 0x00020000")
    e("v_lshlrev_b32 v1, 4, v0")
    NPRE = 20
    for i in range(NPRE):
        e(f"s_mov_b32 s{S_T0}, {i*1024}")
        e(f"buffer_load_dwordx4 {vr(64+4*(i%16),4)}, v1, {srd(SRD_A)}, s{S_T0} offen")
    A.label("L_NOPRE")
v_loads()
e("s_branch L_PV")

A.label("L_S1")
e("s_setprio 3")
lane_gc(2, 3)
e("v_lshrrev_b32 v4, 2, v3")
e("v_and_b32 v5, 3, v3")
e(f"s_mov_b32 s{SRD_A}, s{S_X}")
e(f"s_mov_b32 s{SRD_A+1}, s{S_X+1}")
e(f"s_mov_b32 s{SRD_A+2}, 4096")
e(f"s_mov_b32 s{SRD_A+3}, 0x00020000")
e(f"s_lshl_b32 s{S_T0}, s{S_JW}, 19")
e(f"s_lshl_b32 s{S_T1}, s{S_H}, 8")
e(f"s_add_u32 s{S_T0}, s{S_T0}, s{S_T1}")
e(f"s_add_u32 s{SRD_B}, s{S_WQ}, s{S_T0}")
e(f"s_addc_u32 s{SRD_B+1}, s{S_WQ+1}, 0")
e(f"s_sub_u32 s{SRD_B+2}, 0x80000, s{S_T1}")
e(f"s_mov_b32 s{SRD_B+3}, 0x00020000")
e("v_lshlrev_b32 v8, 16, v2")
e("v_lshl_add_u32 v8, v3, 4, v8")
e("v_lshlrev_b32 v6, 10, v4")
e("v_lshl_add_u32 v7, v2, 4, v6")
e("v_lshl_add_u32 v6, v2, 8, v6")
e("v_lshl_add_u32 v6, v5, 6, v6")
e("v_and_b32 v9, 1, v5")
e("v_lshl_add_u32 v7, v9, 6, v7")
e(f"s_lshl_b32 s{S_T2}, s{S_JW}, 7")
for k in range(4):
    e(f"buffer_load_dwordx4 {vr(16+4*k,4)}, v6, {srd(SRD_A)}, 0 offen offset:{16*k}")
e(f"buffer_load_dwordx4 v[32:35], v7, {srd(SRD_A)}, s{S_T2} offen")
for s in range(2):
    for ee in range(8):
        e(f"s_mov_b32 s{S_T0}, {(32*s+ee)*8192}")
        e(f"buffer_load_dwordx4 {vr(128 + 4*(8*s+ee), 4)}, v8, {srd(SRD_B)}, s{S_T0} offen")
e("s_barrier")
stamp(1)
e("s_waitcnt vmcnt(16)")
e(f"v_dot2_f32_bf16 v40, v16, s{S_ONES}, 0")
e(f"v_dot2_f32_bf16 v41, v17, s{S_ONES}, 0")
for k in range(2, 16):
    e(f"v_dot2_f32_bf16 v{40+(k&1)}, v{16+k}, s{S_ONES}, v{40+(k&1)}")
e("v_add_f32 v40, v40, v41")
dpp("v_add_f32", 40, 40, 40, "quad_perm:[1,0,3,2]")
dpp("v_add_f32", 40, 40, 40, "quad_perm:[2,3,0,1]")
allreduce_rows(40, 41)
e("v_mul_f32 v40, 0x3B000000, v40")
e("v_sub_f32 v42, 0, v40")
e("v_sub_f32 v43, 0, v40")
e("v_mov_b32 v46, 0")
e("v_mov_b32 v47, 0")
for k in range(16):
    t = 44 + 4 * (k & 1)
    if k & 1:
        t = 48
    e(f"v_lshlrev_b32 v{t}, 16, v{16+k}")
    e(f"v_and_b32 v{t+1}, 0xffff0000, v{16+k}")
    e(f"v_pk_add_f32 {vr(t,2)}, {vr(t,2)}, v[42:43]")
    e(f"v_pk_fma_f32 v[46:47], {vr(t,2)}, {vr(t,2)}, v[46:47]")
e("v_add_f32 v46, v46, v47")
dpp("v_add_f32", 46, 46, 46, "quad_perm:[1,0,3,2]")
dpp("v_add_f32", 46, 46, 46, "quad_perm:[2,3,0,1]")
allreduce_rows(46, 47)
e("v_mul_f32 v46, 0x3B000000, v46")
finish_ln(40, 46, 41, 42, 43)
normalize8(32, 36, 41, 42, 48)
e("s_waitcnt lgkmcnt(0)")
make_tags()
e("v_mov_b32 v60, 0xff")
stamp(2)
for s in range(2):
    e(f"s_waitcnt vmcnt({8 - 8*s})")
    for t in range(8):
        for d in range(4):
            lo = 128 + 4 * (8 * s + 2 * d) + (t >> 1)
            hi = 128 + 4 * (8 * s + 2 * d + 1) + (t >> 1)
            e(f"v_perm_b32 v{192 + 32*s + 4*t + d}, v{hi}, v{lo}, s{S_SELH if t & 1 else S_SELL}")
    for t in range(8):
        e(f"v_mfma_f32_16x16x32_bf16 {vr(64 + 32*s + 4*t, 4)}, v[36:39], {vr(192 + 32*s + 4*t, 4)}, 0")
for t in range(8):
    e(f"v_add_f32 v{16+t}, v{64 + 4*t}, v{96 + 4*t + 1}")
tag_granule(16, 60)
tag_granule(20, 60)
e("v_lshlrev_b32 v6, 9, v2")
e("v_lshl_add_u32 v6, v3, 5, v6")
e(f"s_lshl_b32 s{S_T0}, s{S_H}, 14")
e(f"s_lshl_b32 s{S_T1}, s{S_JW}, 11")
e(f"s_add_u32 s{S_T0}, s{S_T0}, s{S_T1}")
e(f"s_add_u32 s{S_T0}, s{S_T0}, {G_Q}")
e(f"buffer_store_dwordx4 v[16:19], v6, {srd(SRD_WS)}, s{S_T0} offen sc1")
e(f"buffer_store_dwordx4 v[20:23], v6, {srd(SRD_WS)}, s{S_T0} offen offset:16 sc1")
e("v_mov_b32 v4, 0")
e("v_mov_b32 v5, 1")
e(f"ds_write_b32 v4, v5 offset:{F_S1}")
stamp(3)
e("s_setprio 0")
v_loads()
e("s_branch L_PV")

A.label("L_QG")
e("s_barrier")
e("s_setprio 3")
lane_gc(2, 3)
e("s_waitcnt lgkmcnt(0)")
make_tags()
e("v_lshlrev_b32 v6, 11, v2")
e("v_lshl_add_u32 v6, v3, 5, v6")
e(f"s_lshl_b32 s{S_T3}, s{S_H}, 14")
e(f"s_lshl_b32 s{S_T1}, s{S_B}, 9")
e(f"s_add_u32 s{S_T3}, s{S_T3}, s{S_T1}")
e(f"s_add_u32 s{S_T3}, s{S_T3}, {G_Q}")
e(f"s_add_u32 s{S_T4}, s{S_T3}, 8192")
e("v_mov_b32 v4, 0")
lds_wait(F_S1, 1, 4, 8)
stamp(1)
gpoll([f"buffer_load_dwordx4 v[16:19], v6, {srd(SRD_WS)}, s{S_T3} offen sc1",
       f"buffer_load_dwordx4 v[20:23], v6, {srd(SRD_WS)}, s{S_T3} offen offset:16 sc1",
       f"buffer_load_dwordx4 v[24:27], v6, {srd(SRD_WS)}, s{S_T4} offen sc1",
       f"buffer_load_dwordx4 v[28:31], v6, {srd(SRD_WS)}, s{S_T4} offen offset:16 sc1"],
      lambda: check_xor_granules([16, 20, 24, 28], 32))
stamp(2)
for i in range(4):
    e(f"v_pk_add_f32 {vr(16+2*i,2)}, {vr(16+2*i,2)}, {vr(24+2*i,2)}")
for i in range(4):
    e(f"v_permlane32_swap_b32 v{16+i}, v{20+i}")
for i in range(4):
    e(f"v_add_f32 v{16+i}, v{16+i}, v{20+i}")
for i in range(2):
    e(f"v_permlane16_swap_b32 v{16+i}, v{18+i}")
for i in range(2):
    e(f"v_add_f32 v{16+i}, v{16+i}, v{18+i}")
e("v_cvt_pk_bf16_f32 v16, v16, v17")
e("v_lshlrev_b32 v7, 4, v3")
e("v_lshl_add_u32 v7, v2, 2, v7")
e("v_mov_b32 v8, 0")
e("v_mov_b32 v9, 1")
e(f"ds_write_b32 v7, v16 offset:{L_Q}")
e(f"ds_write_b32 v8, v9 offset:{F_Q}")
stamp(3)
e("s_setprio 0")
v_loads()

A.label("L_PV")
lane_gc(2, 3)
e("v_mov_b32 v4, 0")
e("v_mov_b32 v5, 1")
e("s_mov_b64 exec, 1")
e(f"ds_add_u32 v4, v5 offset:{F_VI}")
e("s_mov_b64 exec, -1")
stamp(4)
e(f"s_and_b32 s{S_T2}, s3, 3")
e(f"s_mul_i32 s{S_T1}, s{S_T2}, 320")
e("v_mul_u32_u24 v6, 80, v2")
e(f"v_add_u32 v6, s{S_T1}, v6")
e(f"s_lshl_b32 s{S_T1}, s{S_T2}, 2")
e(f"v_mov_b32 v7, s{S_T1}")
lds_wait(F_P, 1, 7, 8, extra_reads=[f"ds_read_b128 {vr(16+4*k,4)}, v6 offset:{L_P + 16*k}" for k in range(4)])
stamp(5)
for jj in range(16):
    a = KD + 8 * jj; b = a + 4
    e(f"s_waitcnt vmcnt({30 - 2*jj})")
    for r in range(4):
        e(f"v_perm_b32 v{40+2*r}, v{b+r}, v{a+r}, s{S_SELL}")
        e(f"v_perm_b32 v{41+2*r}, v{b+r}, v{a+r}, s{S_SELH}")
    for q in range(8):
        e(f"v_dot2_f32_bf16 v{32+q}, v{40+q}, v{16+jj}, {'0' if jj == 0 else 'v%d' % (32+q)}")
stamp(6)
for i in range(4):
    e(f"v_permlane32_swap_b32 v{32+i}, v{36+i}")
for i in range(4):
    e(f"v_add_f32 v{32+i}, v{32+i}, v{36+i}")
for i in range(2):
    e(f"v_permlane16_swap_b32 v{32+i}, v{34+i}")
for i in range(2):
    e(f"v_add_f32 v{32+i}, v{32+i}, v{34+i}")
e("v_lshlrev_b32 v6, 5, v3")
e("v_lshl_add_u32 v6, v2, 3, v6")
e(f"s_lshl_b32 s{S_T1}, s{S_T2}, 9")
e(f"v_add_u32 v6, s{S_T1}, v6")
e(f"ds_write_b64 v6, v[32:33] offset:{L_O}")
e("s_mov_b64 exec, 1")
e(f"ds_add_u32 v4, v5 offset:{F_O}")
e("s_mov_b64 exec, -1")
stamp(7)
e("s_cmp_eq_u32 s3, 4")
e("s_cbranch_scc1 L_WORKER_V")
e("s_waitcnt lgkmcnt(0)")
wave_exit()

A.label("L_WORKER_K")
e(f"s_cmp_ge_u32 s{S_SLOT}, 15")
e("s_cbranch_scc1 L_WEXIT")
e("v_mov_b32 v4, 0")
lds_wait(F_O, 4, 4, 20)
e("s_branch L_WORKER")
A.label("L_WORKER_V")
e(f"s_cmp_ge_u32 s{S_SLOT}, 15")
e("s_cbranch_scc1 L_WEXIT")
e("s_waitcnt lgkmcnt(0)")
make_tags()
A.label("L_WORKER")
lane_gc(2, 3)
e("v_lshrrev_b32 v6, 2, v3")
e("v_and_b32 v7, 3, v3")
e("v_mov_b32 v4, 0")
e(f"s_and_b32 s{S_T2}, s3, 3")
e(f"s_mov_b32 s{S_M3}, 0x000F000F")
e(f"s_mov_b32 s{S_M3+1}, 0x000F000F")
e(f"s_cmp_lt_u32 s{S_SLOT}, 4")
e("s_cbranch_scc1 L_RSTAGE")
e(f"s_mul_i32 s{S_ROLE}, s{S_XCD}, 11")
e(f"s_add_u32 s{S_ROLE}, s{S_ROLE}, s{S_SLOT}")
e(f"s_sub_u32 s{S_ROLE}, s{S_ROLE}, 4")
e(f"s_cmp_ge_u32 s{S_ROLE}, 86")
e("s_cbranch_scc1 L_WEXIT")
e(f"s_lshl_b32 s{S_T0}, s{S_ROLE}, 5")
for (sr, sp) in ((SRD_A, S_WG), (SRD_B, S_WU)):
    e(f"s_add_u32 s{sr}, s{sp}, s{S_T0}")
    e(f"s_addc_u32 s{sr+1}, s{sp+1}, 0")
    e(f"s_sub_u32 s{sr+2}, {512*2752}, s{S_T0}")
    e(f"s_mov_b32 s{sr+3}, 0x00020000")
e(f"s_mul_i32 s{S_T1}, s{S_T2}, {128*2752}")
e(f"s_mov_b32 s{S_T0}, {32*2752}")
e(f"v_mul_lo_u32 v8, v6, s{S_T0}")
e(f"s_mov_b32 s{S_T0}, {8*2752}")
e(f"v_mul_lo_u32 v9, v2, s{S_T0}")
e("v_add_u32 v8, v8, v9")
e("v_lshl_add_u32 v8, v7, 3, v8")
e(f"v_add_u32 v8, s{S_T1}, v8")
for m, sr in ((0, SRD_A), (1, SRD_B)):
    for ee in range(8):
        if ee % 2 == 0:
            e(f"s_mov_b32 s{S_T0}, {(ee>>1)*5504}")
        e(f"buffer_load_dwordx2 {vr(128 + 16*m + 2*ee, 2)}, v8, {srd(sr)}, s{S_T0} offen offset:{(ee&1)*2752}")
e("v_lshlrev_b32 v9, 11, v6")
e("v_lshl_add_u32 v9, v7, 7, v9")
e("v_lshl_add_u32 v9, v2, 5, v9")
e(f"s_lshl_b32 s{S_T3}, s{S_T2}, 9")
e(f"s_add_u32 s{S_T3}, s{S_T3}, {G_H}")
e(f"v_mov_b32 v61, s{S_T}")
e("s_waitcnt vmcnt(0)")
for m in range(2):
    for t in range(4):
        for d in range(4):
            lo = 128 + 16 * m + 2 * (2 * d) + (t >> 1)
            hi = 128 + 16 * m + 2 * (2 * d + 1) + (t >> 1)
            e(f"v_perm_b32 v{160 + 16*m + 4*t + d}, v{hi}, v{lo}, s{S_SELH if t & 1 else S_SELL}")
stamp(9)
lds_wait(F_T2, 1, 4, 20)


def chk_h():
    e(f"v_xor_b32 v32, s{S_T16L}, v24")
    for k in range(1, 8):
        e(f"v_bitop3_b32 v32, v32, v{24+k}, s{S_T16H if k & 1 else S_T16L} bitop3:0xf6")
    e("v_and_b32 v32, 0xffff, v32")
    e("v_cmp_ne_u32 vcc, 0, v32")


gpoll([f"buffer_load_dwordx4 v[24:27], v9, {srd(SRD_WS)}, s{S_T3} offen sc1",
       f"buffer_load_dwordx4 v[28:31], v9, {srd(SRD_WS)}, s{S_T3} offen offset:16 sc1"], chk_h)
stamp(10)
for d in range(4):
    e(f"v_perm_b32 v{36+d}, v{25+2*d}, v{24+2*d}, s{S_SELH}")
e(f"v_dot2_f32_bf16 v40, v36, s{S_ONES}, 0")
e("v_dot2_f32_bf16 v41, v36, v36, 0")
for d in range(1, 4):
    e(f"v_dot2_f32_bf16 v40, v{36+d}, s{S_ONES}, v40")
    e(f"v_dot2_f32_bf16 v41, v{36+d}, v{36+d}, v41")
for c in ("quad_perm:[1,0,3,2]", "quad_perm:[2,3,0,1]"):
    dpp("v_add_f32", 40, 40, 40, c)
    dpp("v_add_f32", 41, 41, 41, c)
e("v_permlane32_swap_b32 v40, v41")
e("v_add_f32 v40, v40, v41")
e("v_mov_b32 v41, v40")
e("v_permlane16_swap_b32 v40, v41")
e("v_add_f32 v40, v40, v41")
e("v_lshlrev_b32 v42, 5, v6")
e("v_lshrrev_b32 v43, 5, v0")
e("v_lshl_add_u32 v43, v43, 4, v42")
e(f"s_lshl_b32 s{S_T0}, s{S_T2}, 2")
e(f"v_add_u32 v43, s{S_T0}, v43")
e(f"ds_write_b32 v43, v40 offset:{L_STAT}")
e("s_waitcnt lgkmcnt(0)")
e("s_barrier")
e(f"ds_read_b128 v[44:47], v42 offset:{L_STAT}")
e(f"ds_read_b128 v[48:51], v42 offset:{L_STAT+16}")
e("s_waitcnt lgkmcnt(0)")
e("v_pk_add_f32 v[44:45], v[44:45], v[46:47]")
e("v_pk_add_f32 v[48:49], v[48:49], v[50:51]")
e("v_add_f32 v44, v44, v45")
e("v_add_f32 v48, v48, v49")
e("v_mul_f32 v44, 0x3B000000, v44")
e("v_mul_f32 v48, 0x3B000000, v48")
e("v_fma_f32 v48, -v44, v44, v48")
e("v_max_f32 v48, 0, v48")
finish_ln(44, 48, 45, 46, 47)
normalize8(36, 52, 45, 46, 64)
for m in range(2):
    for t in range(4):
        e(f"v_mfma_f32_16x16x32_bf16 {vr(64 + 16*m + 4*t, 4)}, v[52:55], {vr(160 + 16*m + 4*t, 4)}, 0")
for m in range(2):
    for t in range(4):
        a = 64 + 16 * m + 4 * t
        dpp("v_add_f32", 96 + 4 * m + t, a + 1, a, "row_shl:4")
for q in (2, 3):
    for m in range(2):
        for t in range(4):
            a = 64 + 16 * m + 4 * t
            dpp("v_add_f32", 96 + 4 * m + t, a + q, 96 + 4 * m + t, f"row_shl:{4*q}")
e("v_lshlrev_b32 v42, 7, v2")
e("v_lshl_add_u32 v42, v3, 5, v42")
e(f"s_lshl_b32 s{S_T0}, s{S_T2}, 9")
e(f"v_add_u32 v43, s{S_T0}, v42")
e(f"s_mov_b64 exec, s[{S_M3}:{S_M3+1}]")
e(f"ds_write_b128 v43, v[96:99] offset:{L_RED}")
e(f"ds_write_b128 v43, v[100:103] offset:{L_RED+16}")
e("s_waitcnt lgkmcnt(0)")
e("s_barrier")
e(f"s_cmp_lg_u32 s{S_T2}, 0")
e("s_cbranch_scc1 L_WEXIT")
for w in range(4):
    e(f"ds_read_b128 {vr(64+8*w,4)}, v42 offset:{L_RED + 512*w}")
    e(f"ds_read_b128 {vr(68+8*w,4)}, v42 offset:{L_RED + 512*w + 16}")
e("v_lshrrev_b32 v44, 1, v3")
e("v_lshlrev_b32 v44, 7, v44")
e("v_lshl_add_u32 v44, v2, 5, v44")
e("v_and_b32 v45, 1, v3")
e("v_lshl_add_u32 v44, v45, 4, v44")
e(f"s_lshl_b32 s{S_T0}, s{S_ROLE}, 8")
e(f"s_add_u32 s{S_T0}, s{S_T0}, {G_HH}")
e("v_cmp_eq_u32 vcc, 1, v45")
e("s_waitcnt lgkmcnt(0)")
for k in range(4):
    e(f"v_pk_add_f32 {vr(64+2*k,2)}, {vr(64+2*k,2)}, {vr(72+2*k,2)}")
    e(f"v_pk_add_f32 {vr(80+2*k,2)}, {vr(80+2*k,2)}, {vr(88+2*k,2)}")
for k in range(4):
    e(f"v_pk_add_f32 {vr(64+2*k,2)}, {vr(64+2*k,2)}, {vr(80+2*k,2)}")
for k in range(4):
    e(f"v_cvt_pk_bf16_f32 v{72+k}, v{64+2*k}, v{64+2*k+1}")
for k in range(4):
    e(f"v_lshlrev_b32 v{64+2*k}, 16, v{72+k}")
    e(f"v_and_b32 v{64+2*k+1}, 0xffff0000, v{72+k}")
for k in range(4):
    e(f"v_mul_f32 v{64+k}, v{64+k}, v{68+k}")
e("v_cvt_pk_bf16_f32 v72, v64, v65")
e("v_cvt_pk_bf16_f32 v73, v66, v67")
e("v_cndmask_b32 v76, v61, v72, vcc")
e("v_cndmask_b32 v77, v61, v73, vcc")
e("v_cndmask_b32 v78, v72, v61, vcc")
e("v_cndmask_b32 v79, v73, v61, vcc")
e(f"buffer_store_dwordx4 v[76:79], v44, {srd(SRD_WS)}, s{S_T0} offen sc1")
stamp(11)
e("s_branch L_WEXIT")

A.label("L_RSTAGE")
e(f"s_lshl_b32 s{S_ROLE}, s{S_XCD}, 2")
e(f"s_add_u32 s{S_ROLE}, s{S_ROLE}, s{S_SLOT}")
e(f"s_lshl_b32 s{S_T0}, s{S_ROLE}, 5")
e(f"s_add_u32 s{SRD_A}, s{S_WD}, s{S_T0}")
e(f"s_addc_u32 s{SRD_A+1}, s{S_WD+1}, 0")
e(f"s_sub_u32 s{SRD_A+2}, {1376*1024}, s{S_T0}")
e(f"s_mov_b32 s{SRD_A+3}, 0x00020000")
e("v_lshlrev_b32 v8, 15, v6")
e("v_lshl_add_u32 v8, v2, 13, v8")
e("v_lshl_add_u32 v8, v7, 3, v8")
e(f"s_lshl_b32 s{S_T1}, s{S_T2}, 17")
e(f"v_add_u32 v8, s{S_T1}, v8")
e("v_add_u32 v9, 0x80000, v8")
e("v_add_u32 v10, 0x100000, v8")
e(f"s_mov_b32 s{S_T0}, 4096")
for n in range(3):
    for ee in range(8):
        so = "0" if ee < 4 else f"s{S_T0}"
        e(f"buffer_load_dwordx2 {vr(128 + 16*n + 2*ee, 2)}, v{8+n}, {srd(SRD_A)}, {so} offen offset:{(ee&3)*1024}")
e("v_lshl_add_u32 v11, v7, 2, v2")
e(f"s_lshl_b32 s{S_T1}, s{S_T2}, 4")
e(f"v_add_u32 v11, s{S_T1}, v11")
e("v_add_u32 v15, 168, v2")
e("v_lshlrev_b32 v16, 5, v6")
for n in range(3):
    e(f"v_add_u32 v{12+n}, {64*n}, v11")
    e(f"v_min_u32 v{12+n}, v{12+n}, v15")
    e(f"v_lshl_add_u32 v{12+n}, v{12+n}, 7, v16")
e(f"s_mov_b32 s{S_T3}, {G_HH}")
e("s_waitcnt vmcnt(0)")
for n in range(3):
    for t in range(4):
        for d in range(4):
            lo = 128 + 16 * n + 2 * (2 * d) + (t >> 1)
            hi = 128 + 16 * n + 2 * (2 * d + 1) + (t >> 1)
            e(f"v_perm_b32 v{192 + 16*n + 4*t + d}, v{hi}, v{lo}, s{S_SELH if t & 1 else S_SELL}")
stamp(9)
lds_wait(F_T3, 1, 4, 20)


def chk_hh():
    e(f"v_xor_b32 v20, s{S_T}, v24")
    e(f"v_bitop3_b32 v20, v20, v30, s{S_T} bitop3:0xf6")
    for n in (1, 2):
        e(f"v_bitop3_b32 v20, v20, v{24+8*n}, s{S_T} bitop3:0xf6")
        e(f"v_bitop3_b32 v20, v20, v{30+8*n}, s{S_T} bitop3:0xf6")
    e("v_cmp_ne_u32 vcc, 0, v20")


gpoll([f"buffer_load_dwordx4 {vr(24+8*n+4*k,4)}, v{12+n}, {srd(SRD_WS)}, s{S_T3} offen offset:{16*k} sc1" for n in range(3) for k in range(2)], chk_hh)
stamp(10)
for n in range(3):
    for t in range(4):
        c = "0" if n == 0 else vr(64 + 4 * t, 4)
        e(f"v_mfma_f32_16x16x32_bf16 {vr(64 + 4*t, 4)}, {vr(26+8*n,4)}, {vr(192 + 16*n + 4*t, 4)}, {c}")
for t in range(4):
    dpp("v_add_f32", 96 + t, 64 + 4 * t + 1, 64 + 4 * t, "row_shl:4")
for q in (2, 3):
    for t in range(4):
        dpp("v_add_f32", 96 + t, 64 + 4 * t + q, 96 + t, f"row_shl:{4*q}")
e("v_lshlrev_b32 v42, 6, v2")
e("v_lshl_add_u32 v42, v3, 4, v42")
e(f"s_lshl_b32 s{S_T0}, s{S_T2}, 8")
e(f"v_add_u32 v43, s{S_T0}, v42")
e(f"s_mov_b64 exec, s[{S_M3}:{S_M3+1}]")
e(f"ds_write_b128 v43, v[96:99] offset:{L_RED}")
e("s_waitcnt lgkmcnt(0)")
e("s_barrier")
e(f"s_cmp_lg_u32 s{S_T2}, 0")
e("s_cbranch_scc1 L_WEXIT")
for w in range(4):
    e(f"ds_read_b128 {vr(64+4*w,4)}, v42 offset:{L_RED + 256*w}")
e("v_lshlrev_b32 v44, 5, v2")
e("v_lshl_add_u32 v44, v3, 3, v44")
e(f"ds_read_b64 v[80:81], v44 offset:{L_H}")
e(f"s_mov_b32 s{SRD_B}, s{S_OUT}")
e(f"s_mov_b32 s{SRD_B+1}, s{S_OUT+1}")
e(f"s_mov_b32 s{SRD_B+2}, 4096")
e(f"s_mov_b32 s{SRD_B+3}, 0x00020000")
e("v_lshlrev_b32 v45, 10, v2")
e("v_lshl_add_u32 v45, v3, 3, v45")
e(f"s_lshl_b32 s{S_T0}, s{S_ROLE}, 5")
e("s_waitcnt lgkmcnt(0)")
e("v_pk_add_f32 v[64:65], v[64:65], v[68:69]")
e("v_pk_add_f32 v[66:67], v[66:67], v[70:71]")
e("v_pk_add_f32 v[72:73], v[72:73], v[76:77]")
e("v_pk_add_f32 v[74:75], v[74:75], v[78:79]")
e("v_pk_add_f32 v[64:65], v[64:65], v[72:73]")
e("v_pk_add_f32 v[66:67], v[66:67], v[74:75]")
e("v_cvt_pk_bf16_f32 v68, v64, v65")
e("v_cvt_pk_bf16_f32 v69, v66, v67")
for k in range(2):
    e(f"v_lshlrev_b32 v{64+2*k}, 16, v{68+k}")
    e(f"v_and_b32 v{65+2*k}, 0xffff0000, v{68+k}")
    e(f"v_lshlrev_b32 v{72+2*k}, 16, v{80+k}")
    e(f"v_and_b32 v{73+2*k}, 0xffff0000, v{80+k}")
e("v_pk_add_f32 v[64:65], v[64:65], v[72:73]")
e("v_pk_add_f32 v[66:67], v[66:67], v[74:75]")
e("v_cvt_pk_bf16_f32 v68, v64, v65")
e("v_cvt_pk_bf16_f32 v69, v66, v67")
e(f"buffer_store_dwordx2 v[68:69], v45, {srd(SRD_B)}, s{S_T0} offen")
e(f"s_cmp_lg_u32 s{S_ROLE}, 0")
e("s_cbranch_scc1 L_RDONE")
e(f"s_add_u32 s{S_T0}, s{S_EP}, 1")
e(f"v_mov_b32 v46, s{S_T0}")
e("s_mov_b64 exec, 1")
e(f"buffer_store_dword v46, v4, {srd(SRD_WS)}, 0 offen")
A.label("L_RDONE")
stamp(11)
A.label("L_WEXIT")
e("s_mov_b64 exec, -1")
wave_exit()
A.label("L_END")
e("s_endpgm")
A.label("L_CODE_END")

body, nn = A.finish()
hdr = open("cdna_kernels/" + NAME + ".s.ref").read().split("\n")
out = []
for l in hdr:
    if l.startswith("; @launch"):
        out.append(f"; @launch grid=(256,1,1) block=(512,1,1) lds={LDS_BYTES}")
        continue
    out.append(l)
    if l.startswith(NAME + "_kernel:"):
        break
out += body
out += hdr[hdr.index("s_endpgm") + 1:]
open(sys.argv[1], "w").write("\n".join(out) + "\n")
print(f"wrote {sys.argv[1]}: {len(body)} lines, {nn} nop states inserted")
```

```python
import sys
from asmlib import Asm

NAME = "sequential_preLN__sliding_block_cached__glu_gated_bilinear__decode"
OPT = dict(stamps=0, spin_lds=200000, spin_g=40000, nfast=64, pre=1, f_at=2, r_at=2, qpipe=3, apipe=2, hpipe=2,
           wnt=1, hprio=3, t1prio=3, f_pre=0, r_pre=0, mcp_o=1, mcp_a=1, mcp_h=1, mcp_hh=1,
           bo=20, ba=32, bh=8, bhh=32, dbg_a=0, gapnop=0)
for a in sys.argv[2:]:
    k, v = a.split("=")
    OPT[k] = int(v, 0)

G_Q, G_OA, G_OB, G_A, G_HA, G_HB, G_HH = 0x10000, 0xA0000, 0xD0000, 0x100000, 0x120000, 0x130000, 0x140000
WS_BYTES = 0x200000
STAMP_OFF = 0x10000000
F_Q, F_S1, F_O, F_T1 = 0, 4, 8, 12
L_Q, L_ML, L_STAT, L_P, L_O, L_RED = 0x100, 0x200, 0x240, 0x300, 0x800, 0x1000
LDS_BYTES = 8192
S_X, S_K, S_V, S_WQ, S_WO, S_WG, S_WU, S_WD, S_OUT, S_WS = 4, 6, 8, 10, 12, 16, 18, 20, 22, 26
S_H, S_JW, S_B, S_HALF = 28, 29, 30, 31
S_TB = 32
S_T, S_T16L, S_T16H, S_EP = 36, 37, 38, 39
SRD_ST, SRD_WS, SRD_A, SRD_B = 40, 44, 48, 52
S_T0, S_T1, S_CNT, S_T2 = 56, 57, 58, 59
S_SLOT, S_XCD = 60, 61
S_M1, S_M2 = 62, 64
S_SELL, S_SELH, S_ONES = 66, 67, 68
S_ROLE = 69
S_T3, S_T4 = 70, 71
S_STAMP = 72
NST = 12
S_M3 = 96
S_F = 98
LOG2E = 0x3FB8AA3B
NVGPR = 168
KD = 40
WNT = " nt" if OPT["wnt"] else ""

A = Asm()
e = A


def srd(n):
    return f"s[{n}:{n+3}]"


def vr(a, n):
    return f"v[{a}:{a+n-1}]"


def stamp(k):
    if OPT["stamps"]:
        e(f"s_memrealtime s[{S_STAMP+2*k}:{S_STAMP+2*k+1}]")


def stamp_init():
    if OPT["stamps"]:
        for k in range(2 * NST):
            e(f"s_mov_b32 s{S_STAMP+k}, 0")


def stamp_flush():
    if not OPT["stamps"]:
        return
    e("s_waitcnt lgkmcnt(0) vmcnt(0)")
    e(f"s_add_u32 s{SRD_A}, s{S_WS}, {STAMP_OFF}")
    e(f"s_addc_u32 s{SRD_A+1}, s{S_WS+1}, 0")
    e(f"s_mov_b32 s{SRD_A+2}, 0x100000")
    e(f"s_mov_b32 s{SRD_A+3}, 0x00020000")
    e(f"s_lshl_b32 s{S_T0}, s2, 11")
    e(f"s_lshl_b32 s{S_T1}, s3, 7")
    e(f"s_add_u32 s{S_T0}, s{S_T0}, s{S_T1}")
    e("s_mov_b64 exec, 1")
    e("v_mov_b32 v1, 0")
    for k in range(NST):
        e(f"v_mov_b32 v2, s{S_STAMP+2*k}")
        e(f"v_mov_b32 v3, s{S_STAMP+2*k+1}")
        e(f"buffer_store_dwordx2 v[2:3], v1, {srd(SRD_A)}, s{S_T0} offen offset:{8*k}")
        e("s_nop 1")


def wave_exit():
    stamp_flush()
    e("s_endpgm")


def bf16_round(dst, src):
    e(f"v_cvt_pk_bf16_f32 v{dst}, v{src}, v{src}")
    e(f"v_and_b32 v{dst}, 0xffff0000, v{dst}")


def allreduce_rows(v, t, op="v_add_f32"):
    e(f"v_mov_b32 v{t}, v{v}")
    e(f"v_permlane32_swap_b32 v{v}, v{t}")
    e(f"{op} v{v}, v{v}, v{t}")
    e(f"v_mov_b32 v{t}, v{v}")
    e(f"v_permlane16_swap_b32 v{v}, v{t}")
    e(f"{op} v{v}, v{v}, v{t}")


def dpp(op, d, a, b, ctrl, extra=""):
    bm = "0xf"
    if "bank_mask:" in ctrl:
        ctrl, bm = ctrl.split(" bank_mask:")
    e(f"{op}_dpp v{d}, v{a}, v{b} {ctrl} row_mask:0xf bank_mask:{bm}{extra}")


def lds_wait(off, val, vaddr, vtmp, extra_reads=()):
    L = A.newlabel("lw"); D = A.newlabel("lwd")
    e(f"s_mov_b32 s{S_CNT}, {OPT['spin_lds']}")
    A.label(L)
    e(f"ds_read_b32 v{vtmp}, v{vaddr} offset:{off}")
    for x in extra_reads:
        e(x)
    e("s_waitcnt lgkmcnt(0)")
    e(f"v_readfirstlane_b32 s{S_T0}, v{vtmp}")
    e(f"s_cmp_eq_u32 s{S_T0}, {val}")
    e(f"s_cbranch_scc1 {D}")
    e(f"s_sub_u32 s{S_CNT}, s{S_CNT}, 1")
    e(f"s_cbranch_scc0 {L}")
    A.label(D)


def gpoll_local(loads, check, sbase, delta, between=None):
    L = A.newlabel("gp"); D = A.newlabel("gpd"); K = A.newlabel("gpk")
    e(f"s_mov_b32 s{S_CNT}, {OPT['spin_g']}")
    if between is not None:
        for x in loads:
            e(x)
        between()
        e("s_waitcnt vmcnt(0)")
        check()
        e(f"s_cbranch_vccz {D}")
    A.label(L)
    for x in loads:
        e(x)
    e("s_waitcnt vmcnt(0)")
    check()
    e(f"s_cbranch_vccz {D}")
    e(f"s_sub_u32 s{S_CNT}, s{S_CNT}, 1")
    e(f"s_cmp_lg_u32 s{S_CNT}, {OPT['spin_g'] - OPT['nfast']}")
    e(f"s_cbranch_scc1 {K}")
    e(f"s_add_u32 s{sbase}, s{sbase}, {delta}")
    A.label(K)
    e(f"s_cmp_lg_u32 s{S_CNT}, 0")
    e(f"s_cbranch_scc1 {L}")
    A.label(D)


def gpoll_pipe(nsets, loads, check, done, lend):
    L = A.newlabel("pp")
    n = len(loads(0))
    Ds = [A.newlabel("ppd") for _ in range(nsets)]
    e(f"s_mov_b32 s{S_CNT}, {OPT['spin_g']}")
    for i in range(nsets):
        for x in loads(i):
            e(x)
    A.label(L)
    for i in range(nsets):
        e(f"s_waitcnt vmcnt({n * (nsets - 1)})")
        check(i)
        e(f"s_cbranch_vccz {Ds[i]}")
        for x in loads(i):
            e(x)
    e(f"s_sub_u32 s{S_CNT}, s{S_CNT}, 1")
    e(f"s_cbranch_scc0 {L}")
    for i in range(nsets):
        A.label(Ds[i])
        done(i)
        if i < nsets - 1:
            e(f"s_branch {lend}")
    A.label(lend)


MASKS = [40, 42, 98, 100, 64]
NMASKS = [4, 6, 8, 10, 12]


def mcp_init(items):
    for it in items:
        for j in range(4):
            if it["kind"] == "tag8":
                e(f"v_not_b32 v{it['D']+j}, s{S_TB+j}")
            elif it["kind"] == "tag16":
                e(f"v_not_b32 v{it['D']+j}, s{S_T16H if j & 1 else S_T16L}")
            else:
                e(f"v_mov_b32 v{it['D']+j}, -1")


def mcp(items, bound, vmask, vt, sbase=None, delta=None, skip_mask_init=()):
    L = A.newlabel("mc"); D = A.newlabel("mcd"); K = A.newlabel("mck")
    for i, it in enumerate(items):
        if i not in skip_mask_init:
            e(f"s_mov_b64 s[{MASKS[i]}:{MASKS[i]+1}], -1")
    e(f"s_mov_b32 s{S_CNT}, {OPT['spin_g']}")
    A.label(L)
    for i, it in enumerate(items):
        e(f"s_mov_b64 exec, s[{MASKS[i]}:{MASKS[i]+1}]")
        e(it["load"].format(D=vr(it["D"], 4)))
    e(f"s_waitcnt vmcnt({bound})")
    order = [x for x in enumerate(items) if x[1]["kind"] != "poison"] + [x for x in enumerate(items) if x[1]["kind"] == "poison"]
    for i, it in order:
        m = f"s[{MASKS[i]}:{MASKS[i]+1}]"
        nm = f"s[{NMASKS[i]}:{NMASKS[i]+1}]"
        k = it["keep"]; d = it["D"]
        e(f"s_mov_b64 exec, {m}")
        if it["kind"] == "poison":
            for j in range(4):
                e(f"v_mov_b32 v{k+j}, v{d+j}")
            e(f"v_max3_u32 v{vt}, v{k}, v{k+1}, v{k+2}")
            e(f"v_max_u32 v{vt}, v{vt}, v{k+3}")
            e(f"v_cmp_eq_u32_e64 {m}, -1, v{vt}")
        else:
            tg = lambda j: S_TB + j if it["kind"] == "tag8" else (S_T16H if j & 1 else S_T16L)
            e(f"v_xor_b32 v{vt}, s{tg(0)}, v{d}")
            for j in range(1, 4):
                e(f"v_bitop3_b32 v{vt}, v{vt}, v{d+j}, s{tg(j)} bitop3:0xf6")
            e(f"v_and_b32 v{vt}, {'0xff' if it['kind'] == 'tag8' else '0xffff'}, v{vt}")
            e(f"v_cmp_ne_u32_e64 {nm}, 0, v{vt}")
    for i, it in enumerate(items):
        if it["kind"] == "poison":
            continue
        m = f"s[{MASKS[i]}:{MASKS[i]+1}]"
        nm = f"s[{NMASKS[i]}:{NMASKS[i]+1}]"
        k = it["keep"]; d = it["D"]
        tg = lambda j: S_TB + j if it["kind"] == "tag8" else (S_T16H if j & 1 else S_T16L)
        e(f"s_mov_b64 exec, {m}")
        if OPT["gapnop"] and len([x for x in items if x["kind"] != "poison"]) == 1:
            e(f"s_nop {OPT['gapnop'] - 1}")
        for j in range(4):
            e(f"v_xor_b32 v{k+j}, s{tg(j)}, v{d+j}")
        e(f"s_and_b64 {m}, {m}, {nm}")
    if len(items) == 1:
        e(f"s_cmp_lg_u64 s[{MASKS[0]}:{MASKS[0]+1}], 0")
    else:
        e(f"s_or_b64 s[{S_T0}:{S_T1}], s[{MASKS[0]}:{MASKS[0]+1}], s[{MASKS[1]}:{MASKS[1]+1}]")
        for i in range(2, len(items)):
            e(f"s_or_b64 s[{S_T0}:{S_T1}], s[{S_T0}:{S_T1}], s[{MASKS[i]}:{MASKS[i]+1}]")
    e(f"s_cbranch_scc0 {D}")
    e(f"s_sub_u32 s{S_CNT}, s{S_CNT}, 1")
    if sbase is not None:
        e(f"s_cmp_lg_u32 s{S_CNT}, {OPT['spin_g'] - OPT['nfast']}")
        e(f"s_cbranch_scc1 {K}")
        e(f"s_add_u32 s{sbase}, s{sbase}, {delta}")
        A.label(K)
    e(f"s_cmp_lg_u32 s{S_CNT}, 0")
    e(f"s_cbranch_scc1 {L}")
    A.label(D)
    e("s_mov_b64 exec, -1")


def half_sum(z, D):
    for i in range(4):
        dpp("v_add_f32", z + i, D + 4 * i + 1, D + 4 * i, "row_ror:8 bank_mask:0x3")
    for i in range(4):
        dpp("v_add_f32", z + i, D + 4 * (i + 4), D + 4 * (i + 4) + 1, "row_ror:8 bank_mask:0xc")


def check_xor_granules(regs, vacc):
    for r in regs:
        for k in range(4):
            e(f"v_xor_b32 v{r+k}, s{S_TB+k}, v{r+k}")
    flat = [r + k for r in regs for k in range(4)]
    e(f"v_or3_b32 v{vacc}, v{flat[0]}, v{flat[1]}, v{flat[2]}")
    i = 3
    while i < len(flat):
        if i + 1 < len(flat):
            e(f"v_or3_b32 v{vacc}, v{vacc}, v{flat[i]}, v{flat[i+1]}"); i += 2
        else:
            e(f"v_or_b32 v{vacc}, v{vacc}, v{flat[i]}"); i += 1
    e(f"v_and_b32 v{vacc}, 0xff, v{vacc}")


def tag_granule(dst, srcs, vff):
    for k in range(4):
        e(f"v_bfi_b32 v{dst+k}, v{vff}, s{S_TB+k}, v{srcs[k]}")


def make_tags():
    e(f"s_add_u32 s{S_T}, s{S_EP}, 0x9E3779B9")
    e(f"s_mul_i32 s{S_T}, s{S_T}, 0x01010101")
    e(f"s_and_b32 s{S_TB}, s{S_T}, 0xff")
    e(f"s_bfe_u32 s{S_TB+1}, s{S_T}, 0x80008")
    e(f"s_bfe_u32 s{S_TB+2}, s{S_T}, 0x80010")
    e(f"s_lshr_b32 s{S_TB+3}, s{S_T}, 24")
    e(f"s_and_b32 s{S_T16L}, s{S_T}, 0xffff")
    e(f"s_lshr_b32 s{S_T16H}, s{S_T}, 16")


def lane_gc(vg_, vc):
    e(f"v_lshrrev_b32 v{vg_}, 4, v0")
    e(f"v_and_b32 v{vc}, 15, v0")


def stream_srd(sptr):
    e(f"s_lshl_b32 s{S_T0}, s{S_B}, 5")
    e(f"s_add_u32 s{S_T0}, s{S_T0}, s{S_H}")
    e(f"s_lshl_b32 s{S_T0}, s{S_T0}, 20")
    e(f"s_lshl_b32 s{S_T1}, s{S_HALF}, 17")
    e(f"s_add_u32 s{S_T0}, s{S_T0}, s{S_T1}")
    e(f"s_add_u32 s{S_T0}, s{S_T0}, 0xC0000")
    e(f"s_add_u32 s{SRD_ST}, s{sptr}, s{S_T0}")
    e(f"s_addc_u32 s{SRD_ST+1}, s{sptr+1}, 0")
    e(f"s_mov_b32 s{SRD_ST+2}, 0x20000")
    e(f"s_mov_b32 s{SRD_ST+3}, 0x00020000")
    e(f"s_and_b32 s{S_T2}, s3, 3")
    e(f"s_lshl_b32 s{S_T2}, s{S_T2}, 10")
    e("v_lshlrev_b32 v1, 4, v0")
    e(f"v_add_u32 v1, s{S_T2}, v1")
    e(f"s_lshl_b32 s{S_T1}, s{S_SLOT}, 12")


def finish_ln(vs1, vvar, vm, vrs, vt):
    bf16_round(vm, vs1)
    bf16_round(vt, vvar)
    e(f"v_add_f32 v{vt}, 0x3727C5AC, v{vt}")
    bf16_round(vt, vt)
    e(f"v_sqrt_f32 v{vt}, v{vt}")
    bf16_round(vt, vt)
    e(f"v_rcp_f32 v{vrs}, v{vt}")


def normalize8(src, dst, vm, vrs, t):
    for d in range(4):
        e(f"v_lshlrev_b32 v{t+2*d}, 16, v{src+d}")
        e(f"v_and_b32 v{t+2*d+1}, 0xffff0000, v{src+d}")
    for i in range(8):
        e(f"v_sub_f32 v{t+i}, v{t+i}, v{vm}")
    for d in range(4):
        e(f"v_cvt_pk_bf16_f32 v{dst+d}, v{t+2*d}, v{t+2*d+1}")
    for d in range(4):
        e(f"v_lshlrev_b32 v{t+2*d}, 16, v{dst+d}")
        e(f"v_and_b32 v{t+2*d+1}, 0xffff0000, v{dst+d}")
    for i in range(8):
        e(f"v_mul_f32 v{t+i}, v{t+i}, v{vrs}")
    for d in range(4):
        e(f"v_cvt_pk_bf16_f32 v{dst+d}, v{t+2*d}, v{t+2*d+1}")


def mk_srd(dst, base, off_sgpr, size_total=None, size_minus=None, size=None):
    e(f"s_add_u32 s{dst}, s{base}, s{off_sgpr}")
    e(f"s_addc_u32 s{dst+1}, s{base+1}, 0")
    if size is not None:
        e(f"s_mov_b32 s{dst+2}, {size}")
    else:
        e(f"s_sub_u32 s{dst+2}, {size_total}, s{off_sgpr}")
    e(f"s_mov_b32 s{dst+3}, 0x00020000")


e("s_cmp_ge_u32 s2, 0x100")
e("s_cbranch_scc1 L_END")
e("s_load_dwordx16 s[4:19], s[0:1], 0")
e("s_load_dwordx8 s[20:27], s[0:1], 64")
stamp_init()
stamp(0)
e("v_lshrrev_b32 v1, 6, v0")
e("v_and_b32 v0, 63, v0")
e("v_readfirstlane_b32 s3, v1")
e(f"s_and_b32 s{S_XCD}, s2, 7")
e(f"s_lshr_b32 s{S_SLOT}, s2, 3")
e(f"s_lshr_b32 s{S_H}, s{S_SLOT}, 3")
e(f"s_lshl_b32 s{S_T0}, s{S_XCD}, 2")
e(f"s_add_u32 s{S_H}, s{S_H}, s{S_T0}")
e(f"s_and_b32 s{S_JW}, s{S_SLOT}, 7")
e(f"s_lshr_b32 s{S_B}, s{S_JW}, 1")
e(f"s_and_b32 s{S_HALF}, s{S_JW}, 1")
e(f"s_mov_b32 s{S_SELL}, 0x05040100")
e(f"s_mov_b32 s{S_SELH}, 0x07060302")
e(f"s_mov_b32 s{S_ONES}, 0x3F803F80")
e("s_cmp_ge_u32 s3, 8")
e("s_cbranch_scc1 L_HELP")
e("s_cmp_ge_u32 s3, 4")
e("s_cbranch_scc1 L_VSIDE")

e("s_waitcnt lgkmcnt(0)")
stream_srd(S_K)
e("s_barrier")
for i in range(32):
    e(f"buffer_load_dwordx4 {vr(KD+4*i,4)}, v1, {srd(SRD_ST)}, s{S_T1} offen nt")
    if i < 31:
        e(f"s_add_u32 s{S_T1}, s{S_T1}, 0x1000")
        e(f"s_and_b32 s{S_T1}, s{S_T1}, 0x1F000")
stamp(1)
lane_gc(2, 3)
e("v_mov_b32 v4, 0")
e("v_lshlrev_b32 v5, 4, v3")
e(f"s_mov_b32 s{S_M1}, 0xAAAAAAAA")
e(f"s_mov_b32 s{S_M1+1}, 0xAAAAAAAA")
e(f"s_mov_b32 s{S_M2}, 0xCCCCCCCC")
e(f"s_mov_b32 s{S_M2+1}, 0xCCCCCCCC")
lds_wait(F_Q, 1, 4, 6, extra_reads=[f"ds_read_b128 v[8:11], v5 offset:{L_Q}"])
stamp(2)


def qk_group(t0, dst):
    R = [KD + 4 * (t0 + t) for t in range(16)]
    for t in range(16):
        e(f"s_waitcnt vmcnt({31 - (t0 + t)})")
        r = R[t]
        e(f"v_dot2_f32_bf16 v{r}, v{r}, v8, 0")
        for k in range(1, 4):
            e(f"v_dot2_f32_bf16 v{r}, v{r+k}, v{8+k}, v{r}")
    for t in range(8):
        dpp("v_add_f32", R[t], R[t], R[t], "row_ror:8 bank_mask:0x3")
    for t in range(8):
        dpp("v_add_f32", R[t], R[t + 8], R[t + 8], "row_ror:8 bank_mask:0xc")
    for t in range(4):
        dpp("v_add_f32", R[t], R[t], R[t], "row_half_mirror bank_mask:0x5")
    for t in range(4):
        dpp("v_add_f32", R[t], R[t + 4], R[t + 4], "row_half_mirror bank_mask:0xa")
    for t in range(4):
        dpp("v_add_f32", R[t], R[t], R[t], "quad_perm:[1,0,3,2]")
    for t in range(4):
        dpp("v_add_f32", R[t], R[t], R[t], "quad_perm:[2,3,0,1]")
    e(f"v_cndmask_b32_e64 v{R[0]}, v{R[0]}, v{R[1]}, s[{S_M1}:{S_M1+1}]")
    e(f"v_cndmask_b32_e64 v{R[2]}, v{R[2]}, v{R[3]}, s[{S_M1}:{S_M1+1}]")
    e(f"v_cndmask_b32_e64 v{dst}, v{R[0]}, v{R[2]}, s[{S_M2}:{S_M2+1}]")


qk_group(0, 12)
qk_group(16, 13)
stamp(3)
e("v_cvt_pk_bf16_f32 v14, v12, v13")
e("v_lshlrev_b32 v12, 16, v14")
e("v_and_b32 v13, 0xffff0000, v14")
e("v_mul_f32 v12, 0x3DB504F3, v12")
e("v_mul_f32 v13, 0x3DB504F3, v13")
e("v_cvt_pk_bf16_f32 v14, v12, v13")
e("v_lshlrev_b32 v12, 16, v14")
e("v_and_b32 v13, 0xffff0000, v14")
e("v_max_f32 v14, v12, v13")
for c in ("row_ror:8", "row_ror:4", "row_ror:2", "row_ror:1"):
    dpp("v_max_f32", 14, 14, 14, c)
allreduce_rows(14, 15, "v_max_f32")
e("v_sub_f32 v12, v12, v14")
e("v_sub_f32 v13, v13, v14")
e(f"v_mul_f32 v12, {LOG2E}, v12")
e(f"v_mul_f32 v13, {LOG2E}, v13")
e("v_exp_f32 v12, v12")
e("v_exp_f32 v13, v13")
e("v_cvt_pk_bf16_f32 v16, v12, v13")
e("v_add_f32 v15, v12, v13")
e(f"s_mul_i32 s{S_T0}, s3, 320")
e("v_mul_u32_u24 v17, 80, v2")
e("v_lshl_add_u32 v17, v3, 2, v17")
e(f"v_add_u32 v17, s{S_T0}, v17")
e(f"ds_write_b32 v17, v16 offset:{L_P}")
for c in ("row_ror:8", "row_ror:4", "row_ror:2", "row_ror:1"):
    dpp("v_add_f32", 15, 15, 15, c)
allreduce_rows(15, 18)
e(f"s_lshl_b32 s{S_T0}, s3, 3")
e(f"v_mov_b32 v17, s{S_T0}")
e("s_mov_b64 exec, 1")
e(f"ds_write_b64 v17, v[14:15] offset:{L_ML}")
e("s_mov_b64 exec, -1")
e("s_waitcnt lgkmcnt(0)")
stamp(4)
e("s_barrier")
stamp(5)
wave_exit()

A.label("L_VSIDE")
e("s_waitcnt lgkmcnt(0)")
e(f"s_load_dword s{S_EP}, s[{S_WS}:{S_WS+1}], 0")
stream_srd(S_V)
e(f"s_xor_b32 s{S_T2}, s{S_T1}, 0x10000")
e("s_barrier")
for j in range(32):
    so = S_T1 if j % 2 == 0 else S_T2
    e(f"buffer_load_dwordx4 {vr(KD+4*j,4)}, v1, {srd(SRD_ST)}, s{so} offen nt")
    if j % 2 == 1 and j < 31:
        e(f"s_add_u32 s{S_T1}, s{S_T1}, 0x1000")
        e(f"s_and_b32 s{S_T1}, s{S_T1}, 0x1F000")
        e(f"s_xor_b32 s{S_T2}, s{S_T1}, 0x10000")
stamp(1)
lane_gc(2, 3)
e("s_waitcnt lgkmcnt(0)")
make_tags()
e(f"s_mov_b32 s{SRD_WS}, s{S_WS}")
e(f"s_mov_b32 s{SRD_WS+1}, s{S_WS+1}")
e(f"s_mov_b32 s{SRD_WS+2}, {WS_BYTES}")
e(f"s_mov_b32 s{SRD_WS+3}, 0x00020000")
e(f"s_and_b32 s{S_T2}, s3, 3")
e(f"s_mul_i32 s{S_T1}, s{S_T2}, 320")
e("v_mul_u32_u24 v1, 80, v2")
e(f"v_add_u32 v1, s{S_T1}, v1")
e("v_mov_b32 v4, 0")
e("s_barrier")
stamp(2)
for k in range(4):
    e(f"ds_read_b128 {vr(8+4*k,4)}, v1 offset:{L_P + 16*k}")
e(f"ds_read_b128 v[24:27], v4 offset:{L_ML}")
e(f"ds_read_b128 v[28:31], v4 offset:{L_ML+16}")
e("s_waitcnt lgkmcnt(0)")
e("v_max_f32 v4, v24, v26")
e("v_max_f32 v5, v28, v30")
e("v_max_f32 v4, v4, v5")
for i, r in enumerate((24, 26, 28, 30)):
    e(f"v_sub_f32 v{32+i}, v{r}, v4")
for i in range(4):
    e(f"v_mul_f32 v{32+i}, {LOG2E}, v{32+i}")
for i in range(4):
    e(f"v_exp_f32 v{32+i}, v{32+i}")
e("v_mul_f32 v5, v32, v25")
e("v_fmac_f32 v5, v33, v27")
e("v_fmac_f32 v5, v34, v29")
e("v_fmac_f32 v5, v35, v31")
for i in range(4):
    e(f"v_readfirstlane_b32 s{S_F+i}, v{32+i}")
e(f"v_mov_b32 v6, s{S_T}")
e(f"v_mov_b32 v7, s{S_T}")
stamp(3)
for jj in range(16):
    a = KD + 8 * jj; b = a + 4
    e(f"s_waitcnt vmcnt({30 - 2*jj})")
    for r in range(4):
        e(f"v_perm_b32 v{32+2*r}, v{b+r}, v{a+r}, s{S_SELL}")
        e(f"v_perm_b32 v{33+2*r}, v{b+r}, v{a+r}, s{S_SELH}")
    for q in range(8):
        e(f"v_dot2_f32_bf16 v{24+q}, v{32+q}, v{8+jj}, {'0' if jj == 0 else 'v%d' % (24+q)}")
stamp(4)
for i in range(4):
    e(f"v_permlane32_swap_b32 v{24+i}, v{28+i}")
for i in range(4):
    e(f"v_add_f32 v{24+i}, v{24+i}, v{28+i}")
for i in range(2):
    e(f"v_permlane16_swap_b32 v{24+i}, v{26+i}")
for i in range(2):
    e(f"v_add_f32 v{24+i}, v{24+i}, v{26+i}")
e("v_lshlrev_b32 v1, 5, v3")
e("v_lshl_add_u32 v1, v2, 3, v1")
e(f"s_and_b32 s{S_T2}, s3, 3")
e(f"s_lshl_b32 s{S_T1}, s{S_T2}, 9")
e(f"v_add_u32 v1, s{S_T1}, v1")
e(f"ds_write_b64 v1, v[24:25] offset:{L_O}")
e("v_bfe_u32 v32, v0, 2, 2")
e("v_lshlrev_b32 v32, 7, v32")
e("v_and_b32 v33, 3, v0")
e("v_lshl_add_u32 v32, v33, 5, v32")
e("v_bfe_u32 v33, v0, 4, 1")
e("v_lshl_add_u32 v32, v33, 4, v32")
e("v_lshlrev_b32 v33, 4, v0")
e("v_mov_b32 v34, 0xff")
e(f"s_mul_i32 s{S_T3}, s{S_H}, 5120")
e(f"s_lshl_b32 s{S_T0}, s{S_HALF}, 2")
e(f"s_add_u32 s{S_T0}, s{S_T0}, s{S_B}")
e(f"s_mul_i32 s{S_T0}, s{S_T0}, 640")
e(f"s_add_u32 s{S_T3}, s{S_T3}, s{S_T0}")
e(f"s_add_u32 s{S_T4}, s{S_T3}, {G_OB}")
e(f"s_add_u32 s{S_T3}, s{S_T3}, {G_OA}")
e("v_mov_b32 v35, 0")
e("v_mov_b32 v36, 1")
e("s_waitcnt lgkmcnt(0)")
e("s_mov_b64 exec, 1")
e(f"ds_add_u32 v35, v36 offset:{F_O}")
e("s_mov_b64 exec, -1")
stamp(5)
e("s_cmp_lg_u32 s3, 4")
e("s_cbranch_scc1 L_VEXIT")
if OPT["t1prio"]:
    e(f"s_setprio {OPT['t1prio']}")
lds_wait(F_O, 4, 35, 37, extra_reads=[f"ds_read_b128 {vr(8+4*w,4)}, v32 offset:{L_O + 512*w}" for w in range(4)])
e("s_mov_b32 exec_hi, 0")
for k in range(4):
    e(f"v_mul_f32 v{4+k}, s{S_F}, v{8+k}")
for w in range(1, 4):
    for k in range(4):
        e(f"v_fmac_f32 v{4+k}, s{S_F+w}, v{8+4*w+k}")
if OPT["mcp_o"]:
    e("s_mov_b32 exec_hi, 0xff")
    tag_granule(4, [4, 5, 6, 7], 34)
else:
    tag_granule(4, [4, 5, 6, 7], 34)
    e("s_mov_b32 exec_hi, 0xff")
e(f"buffer_store_dwordx4 v[4:7], v33, {srd(SRD_WS)}, s{S_T3} offen")
e(f"buffer_store_dwordx4 v[4:7], v33, {srd(SRD_WS)}, s{S_T4} offen sc1")
e(f"ds_write_b32 v35, v36 offset:{F_T1}")
e("s_mov_b64 exec, -1")
stamp(6)
e(f"s_cmp_lt_u32 s{S_SLOT}, 16")
e("s_cbranch_scc1 L_VEXIT")
e("s_barrier")
A.label("L_VEXIT")
wave_exit()

A.label("L_HELP")
if OPT["hprio"]:
    e(f"s_setprio {OPT['hprio']}")
e("v_mov_b32 v2, 0")
e("v_lshlrev_b32 v3, 2, v0")
e("ds_write_b32 v3, v2")
e("s_waitcnt lgkmcnt(0)")
e(f"s_load_dword s{S_EP}, s[{S_WS}:{S_WS+1}], 0")
e(f"s_mov_b32 s{SRD_WS}, s{S_WS}")
e(f"s_mov_b32 s{SRD_WS+1}, s{S_WS+1}")
e(f"s_mov_b32 s{SRD_WS+2}, {WS_BYTES}")
e(f"s_mov_b32 s{SRD_WS+3}, 0x00020000")
lane_gc(2, 3)
e("s_cmp_eq_u32 s3, 8")
e("s_cbranch_scc1 L_S1")
e("s_cmp_eq_u32 s3, 9")
e("s_cbranch_scc1 L_QG")
e("s_barrier")
if OPT["pre"]:
    e("s_cmp_lg_u32 s3, 10")
    e("s_cbranch_scc1 L_NOPRE")
    e(f"s_getpc_b64 s[{SRD_A}:{SRD_A+1}]")
    A.label("L_PC")
    e(f"s_sub_u32 s{SRD_A}, s{SRD_A}, L_PC-{NAME}_kernel")
    e(f"s_subb_u32 s{SRD_A+1}, s{SRD_A+1}, 0")
    e(f"s_mov_b32 s{SRD_A+2}, L_CODE_END-{NAME}_kernel")
    e(f"s_mov_b32 s{SRD_A+3}, 0x00020000")
    e("v_lshlrev_b32 v1, 4, v0")
    e(f"s_lshl_b32 s{S_T0}, s{S_SLOT}, 10")
    e(f"buffer_load_dwordx4 v[160:163], v1, {srd(SRD_A)}, s{S_T0} offen")
    A.label("L_NOPRE")
e("s_waitcnt lgkmcnt(0)")
make_tags()
e("s_branch L_HJOIN")

A.label("L_S1")
e("v_lshrrev_b32 v4, 2, v3")
e("v_and_b32 v5, 3, v3")
e(f"s_mov_b32 s{SRD_A}, s{S_X}")
e(f"s_mov_b32 s{SRD_A+1}, s{S_X+1}")
e(f"s_mov_b32 s{SRD_A+2}, 4096")
e(f"s_mov_b32 s{SRD_A+3}, 0x00020000")
e(f"s_lshl_b32 s{S_T0}, s{S_B}, 20")
e(f"s_lshl_b32 s{S_T1}, s{S_H}, 8")
e(f"s_add_u32 s{S_T0}, s{S_T0}, s{S_T1}")
e(f"s_lshl_b32 s{S_T1}, s{S_HALF}, 7")
e(f"s_add_u32 s{S_T0}, s{S_T0}, s{S_T1}")
e(f"s_add_u32 s{SRD_B}, s{S_WQ}, s{S_T0}")
e(f"s_addc_u32 s{SRD_B+1}, s{S_WQ+1}, 0")
e(f"s_sub_u32 s{SRD_B+2}, 0x400000, s{S_T0}")
e(f"s_mov_b32 s{SRD_B+3}, 0x00020000")
e("v_lshrrev_b32 v9, 3, v3")
e("v_and_b32 v10, 7, v3")
e("v_lshlrev_b32 v8, 16, v2")
e("v_lshl_add_u32 v8, v9, 18, v8")
e("v_lshl_add_u32 v8, v10, 4, v8")
QD = 104
for s_ in range(2):
    for ee in range(8):
        e(f"s_mov_b32 s{S_T0}, {(64*s_+ee)*8192}")
        e(f"buffer_load_dwordx4 {vr(QD + 4*(8*s_+ee), 4)}, v8, {srd(SRD_B)}, s{S_T0} offen{WNT}")
e("v_lshlrev_b32 v6, 10, v4")
e("v_and_b32 v11, 1, v5")
e("v_lshl_add_u32 v7, v11, 6, v6")
e("v_lshl_add_u32 v7, v2, 4, v7")
e("v_lshl_add_u32 v6, v2, 6, v6")
e("v_lshl_add_u32 v6, v5, 4, v6")
e(f"s_lshl_b32 s{S_T2}, s{S_B}, 8")
for k in range(4):
    e(f"buffer_load_dwordx4 {vr(16+4*k,4)}, v6, {srd(SRD_A)}, 0 offen offset:{256*k}")
e(f"buffer_load_dwordx4 v[32:35], v7, {srd(SRD_A)}, s{S_T2} offen")
e(f"buffer_load_dwordx4 v[36:39], v7, {srd(SRD_A)}, s{S_T2} offen offset:128")
e("s_barrier")
stamp(1)
e("s_waitcnt vmcnt(0)")
stamp(2)
e(f"v_dot2_f32_bf16 v40, v16, s{S_ONES}, 0")
e(f"v_dot2_f32_bf16 v41, v17, s{S_ONES}, 0")
for k in range(2, 16):
    e(f"v_dot2_f32_bf16 v{40+(k&1)}, v{16+k}, s{S_ONES}, v{40+(k&1)}")
e("v_add_f32 v40, v40, v41")
dpp("v_add_f32", 40, 40, 40, "quad_perm:[1,0,3,2]")
dpp("v_add_f32", 40, 40, 40, "quad_perm:[2,3,0,1]")
allreduce_rows(40, 41)
e("v_mul_f32 v40, 0x3B000000, v40")
e("v_sub_f32 v42, 0, v40")
e("v_sub_f32 v43, 0, v40")
e("v_mov_b32 v46, 0")
e("v_mov_b32 v47, 0")
for k in range(16):
    t = 44 if (k & 1) == 0 else 48
    e(f"v_lshlrev_b32 v{t}, 16, v{16+k}")
    e(f"v_and_b32 v{t+1}, 0xffff0000, v{16+k}")
    e(f"v_pk_add_f32 {vr(t,2)}, {vr(t,2)}, v[42:43]")
    e(f"v_pk_fma_f32 v[46:47], {vr(t,2)}, {vr(t,2)}, v[46:47]")
e("v_add_f32 v46, v46, v47")
dpp("v_add_f32", 46, 46, 46, "quad_perm:[1,0,3,2]")
dpp("v_add_f32", 46, 46, 46, "quad_perm:[2,3,0,1]")
allreduce_rows(46, 47)
e("v_mul_f32 v46, 0x3B000000, v46")
finish_ln(40, 46, 41, 42, 43)
normalize8(32, 16, 41, 42, 48)
normalize8(36, 20, 41, 42, 48)
e("s_waitcnt lgkmcnt(0)")
make_tags()
e("v_mov_b32 v15, 0xff")
for s_ in range(2):
    fr = 72 if s_ == 0 else QD
    for t in range(8):
        for d in range(4):
            lo = QD + 4 * (8 * s_ + 2 * d) + (t >> 1)
            hi = QD + 4 * (8 * s_ + 2 * d + 1) + (t >> 1)
            e(f"v_perm_b32 v{fr + 4*t + d}, v{hi}, v{lo}, s{S_SELH if t & 1 else S_SELL}")
    for t in range(8):
        c = "0" if s_ == 0 else vr(40 + 4 * t, 4)
        e(f"v_mfma_f32_16x16x32_bf16 {vr(40 + 4*t, 4)}, {vr(16 + 4*s_, 4)}, {vr(fr + 4*t, 4)}, {c}")
e("v_lshlrev_b32 v6, 11, v2")
e("v_lshl_add_u32 v6, v10, 5, v6")
e("v_lshl_add_u32 v6, v9, 4, v6")
e(f"s_lshl_b32 s{S_T0}, s{S_H}, 13")
e(f"s_lshl_b32 s{S_T1}, s{S_JW}, 8")
e(f"s_add_u32 s{S_T0}, s{S_T0}, s{S_T1}")
e(f"s_add_u32 s{S_T0}, s{S_T0}, {G_Q}")
half_sum(24, 40)
tag_granule(24, [24, 25, 26, 27], 15)
e(f"buffer_store_dwordx4 v[24:27], v6, {srd(SRD_WS)}, s{S_T0} offen sc1")
e("v_mov_b32 v4, 0")
e("v_mov_b32 v5, 1")
e(f"ds_write_b32 v4, v5 offset:{F_S1}")
stamp(3)
e("s_branch L_HJOIN")

A.label("L_QG")
e("s_barrier")
e("s_waitcnt lgkmcnt(0)")
make_tags()
e("v_lshlrev_b32 v6, 4, v0")
e(f"s_lshl_b32 s{S_T3}, s{S_H}, 13")
e(f"s_lshl_b32 s{S_T1}, s{S_B}, 11")
e(f"s_add_u32 s{S_T3}, s{S_T3}, s{S_T1}")
e(f"s_add_u32 s{S_T3}, s{S_T3}, {G_Q}")
e("v_and_b32 v7, 31, v0")
e("v_lshlrev_b32 v7, 3, v7")
e("v_lshrrev_b32 v8, 5, v0")
e("v_lshl_add_u32 v7, v8, 2, v7")
e("v_mov_b32 v4, 0")
lds_wait(F_S1, 1, 4, 8)
stamp(1)


def qg_loads(i):
    r = 16 + 8 * i
    return [f"buffer_load_dwordx4 {vr(r,4)}, v6, {srd(SRD_WS)}, s{S_T3} offen sc1",
            f"buffer_load_dwordx4 {vr(r+4,4)}, v6, {srd(SRD_WS)}, s{S_T3} offen offset:1024 sc1"]


def qg_check(i):
    r = 16 + 8 * i
    check_xor_granules([r, r + 4], 12)
    e("v_cmp_ne_u32 vcc, 0, v12")


def qg_done(i):
    r = 16 + 8 * i
    e(f"v_pk_add_f32 {vr(r,2)}, {vr(r,2)}, {vr(r+4,2)}")
    e(f"v_pk_add_f32 {vr(r+2,2)}, {vr(r+2,2)}, {vr(r+6,2)}")
    e(f"v_permlane32_swap_b32 v{r}, v{r+2}")
    e(f"v_permlane32_swap_b32 v{r+1}, v{r+3}")
    e(f"v_add_f32 v{r}, v{r}, v{r+2}")
    e(f"v_add_f32 v{r+1}, v{r+1}, v{r+3}")
    e(f"v_cvt_pk_bf16_f32 v13, v{r}, v{r+1}")


gpoll_pipe(OPT["qpipe"], qg_loads, qg_check, qg_done, "L_QGD")
stamp(2)
e("v_mov_b32 v8, 0")
e("v_mov_b32 v9, 1")
e(f"ds_write_b32 v7, v13 offset:{L_Q}")
e(f"ds_write_b32 v8, v9 offset:{F_Q}")
stamp(3)
e("s_waitcnt vmcnt(0)")

A.label("L_HJOIN")
e("v_lshrrev_b32 v6, 2, v3")
e("v_and_b32 v7, 3, v3")
e("v_mov_b32 v4, 0")
e(f"s_and_b32 s{S_T2}, s3, 3")
e(f"s_mov_b32 s{S_M3}, 0x000F000F")
e(f"s_mov_b32 s{S_M3+1}, 0x000F000F")
e(f"s_cmp_lt_u32 s{S_SLOT}, 11")
e("s_cbranch_scc1 L_FSTAGE")
e(f"s_cmp_lt_u32 s{S_SLOT}, 15")
e("s_cbranch_scc1 L_RSTAGE")
e(f"s_cmp_eq_u32 s{S_SLOT}, 15")
e("s_cbranch_scc1 L_WEXIT")
e(f"s_sub_u32 s{S_ROLE}, s{S_SLOT}, 16")
e(f"s_lshr_b32 s{S_T0}, s{S_ROLE}, 3")
e(f"s_lshl_b32 s{S_T0}, s{S_T0}, 1")
e(f"s_lshr_b32 s{S_T1}, s{S_T2}, 1")
e(f"s_add_u32 s{S_T0}, s{S_T0}, s{S_T1}")
e(f"s_lshl_b32 s{S_T1}, s{S_XCD}, 2")
e(f"s_add_u32 s{S_T0}, s{S_T0}, s{S_T1}")
e(f"s_mul_i32 s{S_T3}, s{S_T0}, 5120")
e(f"s_and_b32 s{S_T1}, s{S_T2}, 1")
e(f"s_lshl_b32 s{S_T4}, s{S_T1}, 7")
e(f"s_add_u32 s{S_T3}, s{S_T3}, s{S_T4}")
e(f"s_add_u32 s{S_T3}, s{S_T3}, {G_OA}")
e(f"s_lshl_b32 s{S_T0}, s{S_T0}, 17")
e(f"s_lshl_b32 s{S_T1}, s{S_T1}, 16")
e(f"s_add_u32 s{S_T0}, s{S_T0}, s{S_T1}")
e(f"s_and_b32 s{S_T1}, s{S_ROLE}, 7")
e(f"s_lshl_b32 s{S_T1}, s{S_T1}, 7")
e(f"s_add_u32 s{S_T0}, s{S_T0}, s{S_T1}")
e(f"s_add_u32 s{SRD_A}, s{S_WO}, s{S_T0}")
e(f"s_addc_u32 s{SRD_A+1}, s{S_WO+1}, 0")
e(f"s_sub_u32 s{SRD_A+2}, 0x400000, s{S_T0}")
e(f"s_mov_b32 s{SRD_A+3}, 0x00020000")
e("v_lshrrev_b32 v9, 3, v3")
e("v_and_b32 v10, 7, v3")
e("v_lshlrev_b32 v8, 15, v9")
e("v_lshl_add_u32 v8, v2, 13, v8")
e("v_lshl_add_u32 v8, v10, 4, v8")
e("v_lshlrev_b32 v17, 8, v2")
e("v_lshl_add_u32 v17, v10, 5, v17")
e("v_lshl_add_u32 v17, v9, 4, v17")
e(f"s_lshl_b32 s{S_T0}, s{S_T2}, 10")
e(f"v_add_u32 v17, s{S_T0}, v17")
e("s_movk_i32 s0, 640")
e("v_mul_lo_u32 v9, v6, s0")
e("v_and_b32 v13, 1, v7")
e("v_mul_u32_u24 v10, 2560, v13")
e("v_add_u32 v10, v10, v9")
e(f"s_and_b32 s{S_T1}, s{S_T2}, 1")
e(f"s_lshl_b32 s{S_T1}, s{S_T1}, 7")
e(f"v_subrev_u32 v10, s{S_T1}, v10")
e("v_add_u32 v10, 512, v10")
e("v_lshl_add_u32 v9, v13, 6, v9")
e("v_lshl_add_u32 v9, v2, 4, v9")
e(f"s_mov_b32 s{S_M1}, 0xAAAAAAAA")
e(f"s_mov_b32 s{S_M1+1}, 0xAAAAAAAA")
e(f"s_lshl_b32 s{S_T4}, s{S_ROLE}, 1")
e(f"s_add_u32 s{S_T4}, s{S_T4}, s{S_T2}")
e(f"s_and_b32 s{S_T4}, s{S_T4}, 31")
e(f"s_mov_b32 s{SRD_B}, s{S_X}")
e(f"s_mov_b32 s{SRD_B+1}, s{S_X+1}")
e(f"s_mov_b32 s{SRD_B+2}, 4096")
e(f"s_mov_b32 s{SRD_B+3}, 0x00020000")
e("v_lshlrev_b32 v11, 10, v6")
e("v_lshl_add_u32 v11, v7, 3, v11")
e("v_lshrrev_b32 v12, 1, v2")
e("v_lshl_add_u32 v11, v12, 2, v11")
e(f"s_lshl_b32 s{S_T0}, s{S_T4}, 5")
e(f"buffer_load_dword v14, v11, {srd(SRD_B)}, s{S_T0} offen")
e("v_mov_b32 v15, 0xff")
WO = 136
WF = 104
A_D = [52, 88, 92, 100]
if OPT["mcp_a"]:
    e("v_lshlrev_b32 v18, 4, v0")
    A_IT = [dict(D=A_D[k], keep=24+4*k, kind="tag8",
                 load="buffer_load_dwordx4 {D}, v18, " + f"{srd(SRD_WS)}, s{S_T3} offen offset:{1024*k} sc1") for k in range(4)]
    mcp_init(A_IT)
stamp(4)
e("s_barrier")
stamp(5)
for ee in range(8):
    if ee % 4 == 0:
        e(f"s_mov_b32 s{S_T0}, {(ee>>2)*4096}")
    e(f"buffer_load_dwordx4 {vr(WO + 4*ee, 4)}, v8, {srd(SRD_A)}, s{S_T0} offen offset:{(ee&3)*1024}{WNT}")
e("s_waitcnt vmcnt(0)")
stamp(6)
for t in range(8):
    for d in range(4):
        lo = WO + 4 * (2 * d) + (t >> 1)
        hi = WO + 4 * (2 * d + 1) + (t >> 1)
        e(f"v_perm_b32 v{WF + 4*t + d}, v{hi}, v{lo}, s{S_SELH if t & 1 else S_SELL}")


def chk_o():
    check_xor_granules([24, 28, 32, 36], 20)
    e(f"v_xor_b32 v21, s{S_T}, v42")
    e(f"v_bitop3_b32 v20, v20, v43, s{S_T} bitop3:0xf6")
    e("v_or_b32 v20, v20, v21")
    e("v_cmp_ne_u32 vcc, 0, v20")


if OPT["mcp_o"]:
    O_IT = [dict(D=136+4*i, keep=24+4*i, kind="tag8",
                 load="buffer_load_dwordx4 {D}, v9, " + f"{srd(SRD_WS)}, s{S_T3} offen offset:{o} sc1") for i, o in enumerate((0, 256, 2560, 2816))]
    O_IT.append(dict(D=152, keep=40, kind="tag8", load="buffer_load_dwordx4 {D}, v10, " + f"{srd(SRD_WS)}, s{S_T3} offen sc1"))
    mcp_init(O_IT)
    mcp(O_IT, OPT["bo"], {"tag8": 15}, 20, S_T3, G_OB - G_OA)
else:
    gpoll_local([f"buffer_load_dwordx4 {vr(24+4*i,4)}, v9, {srd(SRD_WS)}, s{S_T3} offen offset:{o} sc1" for i, o in enumerate((0, 256, 2560, 2816))]
                + [f"buffer_load_dwordx4 v[40:43], v10, {srd(SRD_WS)}, s{S_T3} offen sc1"],
                chk_o, S_T3, G_OB - G_OA)
stamp(7)
e("v_mov_b32_dpp v44, v40 quad_perm:[1,0,3,2] row_mask:0xf bank_mask:0xf")
e("v_mov_b32_dpp v45, v41 quad_perm:[1,0,3,2] row_mask:0xf bank_mask:0xf")
e("v_max_f32 v46, v40, v44")
e("v_sub_f32 v47, v40, v46")
e("v_sub_f32 v48, v44, v46")
e(f"v_mul_f32 v47, {LOG2E}, v47")
e(f"v_mul_f32 v48, {LOG2E}, v48")
e("v_exp_f32 v47, v47")
e("v_exp_f32 v48, v48")
e("v_mul_f32 v49, v47, v41")
e("v_fmac_f32 v49, v48, v45")
e("v_rcp_f32 v49, v49")
e(f"v_cndmask_b32_e64 v50, v47, v48, s[{S_M1}:{S_M1+1}]")
e(f"v_cndmask_b32_e64 v51, v48, v47, s[{S_M1}:{S_M1+1}]")
e("v_mul_f32 v50, v50, v49")
e("v_mul_f32 v51, v51, v49")
for k in range(8):
    e(f"v_mul_f32 v{24+k}, v50, v{24+k}")
for k in range(8):
    e(f"v_fmac_f32 v{24+k}, v51, v{32+k}")
for d in range(4):
    e(f"v_cvt_pk_bf16_f32 v{20+d}, v{24+2*d}, v{24+2*d+1}")
for t in range(8):
    e(f"v_mfma_f32_16x16x32_bf16 {vr(56 + 4*t, 4)}, v[20:23], {vr(WF + 4*t, 4)}, 0")
half_sum(96, 56)
e(f"ds_write_b128 v17, v[96:99] offset:{L_RED}")
e("s_waitcnt lgkmcnt(0)")
e("s_barrier")
stamp(8)
e(f"s_cmp_lt_u32 s{S_T2}, 2")
e("s_cbranch_scc1 L_T3")
e(f"s_cmp_lg_u32 s{S_T2}, 2")
e("s_cbranch_scc1 L_WEXIT")
e("v_lshlrev_b32 v44, 8, v6")
e("v_lshl_add_u32 v44, v2, 6, v44")
e("v_lshl_add_u32 v44, v7, 4, v44")
for w in range(4):
    e(f"ds_read_b128 {vr(64+4*w,4)}, v44 offset:{L_RED + 1024*w}")
e("v_lshlrev_b32 v46, 4, v3")
e("v_lshl_add_u32 v46, v2, 12, v46")
e(f"s_and_b32 s{S_T0}, s{S_ROLE}, 7")
e(f"s_lshl_b32 s{S_T0}, s{S_T0}, 14")
e(f"s_lshl_b32 s{S_T1}, s{S_XCD}, 9")
e(f"s_add_u32 s{S_T0}, s{S_T0}, s{S_T1}")
e(f"s_lshr_b32 s{S_T1}, s{S_ROLE}, 3")
e(f"s_lshl_b32 s{S_T1}, s{S_T1}, 8")
e(f"s_add_u32 s{S_T0}, s{S_T0}, s{S_T1}")
e(f"s_add_u32 s{S_T0}, s{S_T0}, {G_A}")
e("s_waitcnt lgkmcnt(0)")
e("v_pk_add_f32 v[64:65], v[64:65], v[68:69]")
e("v_pk_add_f32 v[66:67], v[66:67], v[70:71]")
e("v_pk_add_f32 v[72:73], v[72:73], v[76:77]")
e("v_pk_add_f32 v[74:75], v[74:75], v[78:79]")
e("v_pk_add_f32 v[64:65], v[64:65], v[72:73]")
e("v_pk_add_f32 v[66:67], v[66:67], v[74:75]")
tag_granule(64, [64, 65, 66, 67], 15)
e(f"buffer_store_dwordx4 v[64:67], v46, {srd(SRD_WS)}, s{S_T0} offen sc1")
stamp(9)
e("s_branch L_WEXIT")

A.label("L_T3")
e("v_lshlrev_b32 v11, 4, v0")
e(f"s_lshl_b32 s{S_T0}, s{S_T4}, 12")
e(f"s_add_u32 s{S_T3}, s{S_T0}, {G_A}")
e("v_and_b32 v16, 1, v7")
e("v_lshlrev_b32 v16, 10, v16")
e("v_lshrrev_b32 v17, 1, v7")
e("v_lshl_add_u32 v16, v17, 8, v16")
e("v_lshl_add_u32 v16, v6, 6, v16")
e("v_lshl_add_u32 v16, v12, 3, v16")
e(f"s_lshl_b32 s{S_T0}, s{S_XCD}, 13")
e(f"s_lshr_b32 s{S_T1}, s{S_T4}, 3")
e(f"s_lshl_b32 s{S_T1}, s{S_T1}, 11")
e(f"s_add_u32 s{S_T0}, s{S_T0}, s{S_T1}")
e(f"s_and_b32 s{S_T1}, s{S_T4}, 1")
e(f"s_lshl_b32 s{S_T1}, s{S_T1}, 9")
e(f"s_add_u32 s{S_T0}, s{S_T0}, s{S_T1}")
e(f"s_bfe_u32 s{S_T1}, s{S_T4}, 0x20001")
e(f"s_lshl_b32 s{S_T1}, s{S_T1}, 4")
e(f"s_add_u32 s{S_T0}, s{S_T0}, s{S_T1}")
e(f"s_add_u32 s{S_ROLE}, s{S_T0}, {G_HA}")
e(f"s_add_u32 s{S_T4}, s{S_T0}, {G_HB}")
e("v_mov_b32 v19, 0xffff")


def a_loads(i):
    r = 24 + 16 * i
    return [f"buffer_load_dwordx4 {vr(r+4*k,4)}, v11, {srd(SRD_WS)}, s{S_T3} offen offset:{1024*k} sc1" for k in range(4)]


def a_check(i):
    r = 24 + 16 * i
    check_xor_granules([r, r + 4, r + 8, r + 12], 20)
    e("v_cmp_ne_u32 vcc, 0, v20")


def a_done(i):
    r = 24 + 16 * i
    e(f"v_pk_add_f32 v[64:65], {vr(r,2)}, {vr(r+4,2)}")
    e(f"v_pk_add_f32 v[66:67], {vr(r+2,2)}, {vr(r+6,2)}")
    e(f"v_pk_add_f32 v[68:69], {vr(r+8,2)}, {vr(r+12,2)}")
    e(f"v_pk_add_f32 v[70:71], {vr(r+10,2)}, {vr(r+14,2)}")
    e("v_pk_add_f32 v[64:65], v[64:65], v[68:69]")
    e("v_pk_add_f32 v[66:67], v[66:67], v[70:71]")


if OPT["mcp_a"]:
    mcp(A_IT, OPT["ba"], {"tag8": 15}, 20)
    if OPT["dbg_a"]:
        e("s_waitcnt vmcnt(0)")
        e(f"s_add_u32 s{SRD_A}, s{S_WS}, 0x400000")
        e(f"s_addc_u32 s{SRD_A+1}, s{S_WS+1}, 0")
        e(f"s_mov_b32 s{SRD_A+2}, 0x400000")
        e(f"s_mov_b32 s{SRD_A+3}, 0x00020000")
        e(f"s_lshl_b32 s{S_T0}, s2, 1")
        e(f"s_add_u32 s{S_T0}, s{S_T0}, s{S_T2}")
        e(f"s_lshl_b32 s{S_T0}, s{S_T0}, 13")
        for k in range(4):
            e(f"buffer_store_dwordx4 {vr(24+4*k,4)}, v18, {srd(SRD_A)}, s{S_T0} offen offset:{1024*k}")
        e(f"s_add_u32 s{S_T0}, s{S_T0}, 4096")
        for k in range(4):
            e(f"buffer_store_dwordx4 {vr(A_D[k],4)}, v18, {srd(SRD_A)}, s{S_T0} offen offset:{1024*k}")
        e("s_waitcnt vmcnt(0)")
    a_done(0)
else:
    gpoll_pipe(OPT["apipe"], a_loads, a_check, a_done, "L_T3D")
stamp(9)
e("v_permlane32_swap_b32 v64, v66")
e("v_permlane32_swap_b32 v65, v67")
e("v_add_f32 v64, v64, v66")
e("v_add_f32 v65, v65, v67")
e("v_mov_b32 v66, v64")
e("v_mov_b32 v67, v65")
e("v_permlane16_swap_b32 v64, v66")
e("v_permlane16_swap_b32 v65, v67")
e("v_add_f32 v64, v64, v66")
e("v_add_f32 v65, v65, v67")
e("v_cvt_pk_bf16_f32 v66, v64, v65")
e("v_lshlrev_b32 v68, 16, v14")
e("v_and_b32 v69, 0xffff0000, v14")
e("v_lshlrev_b32 v64, 16, v66")
e("v_and_b32 v65, 0xffff0000, v66")
e("v_add_f32 v64, v64, v68")
e("v_add_f32 v65, v65, v69")
e("v_cvt_pk_bf16_f32 v66, v64, v65")
e(f"v_lshl_or_b32 v68, v66, 16, s{S_T16L}")
e(f"v_bfi_b32 v69, v19, s{S_T16H}, v66")
e("s_mov_b32 exec_lo, 0xffff")
e("s_mov_b32 exec_hi, 0xffff")
e(f"buffer_store_dwordx2 v[68:69], v16, {srd(SRD_WS)}, s{S_ROLE} offen")
e(f"buffer_store_dwordx2 v[68:69], v16, {srd(SRD_WS)}, s{S_T4} offen sc1")
e("s_mov_b64 exec, -1")
stamp(10)
e("s_branch L_WEXIT")

A.label("L_FSTAGE")
e(f"s_mul_i32 s{S_ROLE}, s{S_XCD}, 11")
e(f"s_add_u32 s{S_ROLE}, s{S_ROLE}, s{S_SLOT}")
e(f"s_cmp_ge_u32 s{S_ROLE}, 86")
e("s_cbranch_scc1 L_WEXIT")
e(f"s_lshl_b32 s{S_T0}, s{S_ROLE}, 5")
for (sr, sp) in ((SRD_A, S_WG), (SRD_B, S_WU)):
    e(f"s_add_u32 s{sr}, s{sp}, s{S_T0}")
    e(f"s_addc_u32 s{sr+1}, s{sp+1}, 0")
    e(f"s_sub_u32 s{sr+2}, {512*2752}, s{S_T0}")
    e(f"s_mov_b32 s{sr+3}, 0x00020000")
e(f"s_mul_i32 s{S_T1}, s{S_T2}, {128*2752}")
e(f"s_mov_b32 s{S_T0}, {32*2752}")
e(f"v_mul_lo_u32 v8, v6, s{S_T0}")
e(f"s_mov_b32 s{S_T0}, {8*2752}")
e(f"v_mul_lo_u32 v9, v2, s{S_T0}")
e("v_add_u32 v8, v8, v9")
e("v_lshl_add_u32 v8, v7, 3, v8")
e(f"v_add_u32 v8, s{S_T1}, v8")
FW, FF = 104, 136


def f_loads(lo, hi):
    for idx in range(lo, hi):
        m, ee = idx >> 3, idx & 7
        sr = SRD_A if m == 0 else SRD_B
        if ee % 2 == 0 or idx == lo:
            e(f"s_mov_b32 s{S_T0}, {(ee>>1)*5504}")
        e(f"buffer_load_dwordx2 {vr(FW + 16*m + 2*ee, 2)}, v8, {srd(sr)}, s{S_T0} offen offset:{(ee&1)*2752}{WNT}")


e("v_lshlrev_b32 v9, 4, v0")
e(f"s_lshl_b32 s{S_T3}, s{S_XCD}, 13")
e(f"s_lshl_b32 s{S_T0}, s{S_T2}, 11")
e(f"s_add_u32 s{S_T3}, s{S_T3}, s{S_T0}")
e(f"s_add_u32 s{S_T3}, s{S_T3}, {G_HA}")
e("v_lshrrev_b32 v10, 1, v7")
e("v_lshlrev_b32 v10, 6, v10")
e("v_lshl_add_u32 v10, v2, 4, v10")
e("v_and_b32 v11, 1, v7")
e("v_lshl_add_u32 v10, v11, 3, v10")
e(f"s_lshl_b32 s{S_T4}, s{S_ROLE}, 7")
e(f"s_add_u32 s{S_T4}, s{S_T4}, {G_HH}")
H_IT = [dict(D=56+4*k, keep=24+4*k, kind="tag16",
             load="buffer_load_dwordx4 {D}, v9, " + f"{srd(SRD_WS)}, s{S_T3} offen offset:{1024*k} sc1") for k in range(2)]
if OPT["mcp_h"]:
    mcp_init(H_IT)
    e("v_mov_b32 v21, 0xffff")
stamp(4)
e("s_barrier")
stamp(5)
f_loads(0, OPT["f_pre"])
if OPT["f_pre"] < 16:
    if OPT["f_at"] == 1:
        lds_wait(F_O, 4, 4, 20)
    if OPT["f_at"] == 2:
        lds_wait(F_T1, 1, 4, 20)
    f_loads(OPT["f_pre"], 16)
stamp(6)
e("s_waitcnt vmcnt(0)")
for m in range(2):
    for t in range(4):
        for d in range(4):
            lo = FW + 16 * m + 2 * (2 * d) + (t >> 1)
            hi = FW + 16 * m + 2 * (2 * d + 1) + (t >> 1)
            e(f"v_perm_b32 v{FF + 16*m + 4*t + d}, v{hi}, v{lo}, s{S_SELH if t & 1 else S_SELL}")
stamp(7)


def chk_h():
    e(f"v_xor_b32 v32, s{S_T16L}, v24")
    for k in range(1, 8):
        e(f"v_bitop3_b32 v32, v32, v{24+k}, s{S_T16H if k & 1 else S_T16L} bitop3:0xf6")
    e("v_and_b32 v32, 0xffff, v32")
    e("v_cmp_ne_u32 vcc, 0, v32")


if OPT["mcp_h"]:
    mcp(H_IT, OPT["bh"], {"tag16": 21}, 32, S_T3, G_HB - G_HA)
else:
    gpoll_local([f"buffer_load_dwordx4 v[24:27], v9, {srd(SRD_WS)}, s{S_T3} offen sc1",
                 f"buffer_load_dwordx4 v[28:31], v9, {srd(SRD_WS)}, s{S_T3} offen offset:1024 sc1"], chk_h, S_T3, G_HB - G_HA)
stamp(8)
for d in range(4):
    e(f"v_perm_b32 v{36+d}, v{25+2*d}, v{24+2*d}, s{S_SELH}")
e(f"v_dot2_f32_bf16 v40, v36, s{S_ONES}, 0")
e("v_dot2_f32_bf16 v41, v36, v36, 0")
for d in range(1, 4):
    e(f"v_dot2_f32_bf16 v40, v{36+d}, s{S_ONES}, v40")
    e(f"v_dot2_f32_bf16 v41, v{36+d}, v{36+d}, v41")
for c in ("quad_perm:[1,0,3,2]", "quad_perm:[2,3,0,1]"):
    dpp("v_add_f32", 40, 40, 40, c)
    dpp("v_add_f32", 41, 41, 41, c)
e("v_permlane32_swap_b32 v40, v41")
e("v_add_f32 v40, v40, v41")
e("v_mov_b32 v41, v40")
e("v_permlane16_swap_b32 v40, v41")
e("v_add_f32 v40, v40, v41")
e("v_lshlrev_b32 v42, 5, v6")
e("v_lshrrev_b32 v43, 5, v0")
e("v_lshl_add_u32 v43, v43, 4, v42")
e(f"s_lshl_b32 s{S_T0}, s{S_T2}, 2")
e(f"v_add_u32 v43, s{S_T0}, v43")
e(f"ds_write_b32 v43, v40 offset:{L_STAT}")
e("s_waitcnt lgkmcnt(0)")
e("s_barrier")
e(f"ds_read_b128 v[44:47], v42 offset:{L_STAT}")
e(f"ds_read_b128 v[48:51], v42 offset:{L_STAT+16}")
e("s_waitcnt lgkmcnt(0)")
e("v_pk_add_f32 v[44:45], v[44:45], v[46:47]")
e("v_pk_add_f32 v[48:49], v[48:49], v[50:51]")
e("v_add_f32 v44, v44, v45")
e("v_add_f32 v48, v48, v49")
e("v_mul_f32 v44, 0x3B000000, v44")
e("v_mul_f32 v48, 0x3B000000, v48")
e("v_fma_f32 v48, -v44, v44, v48")
e("v_max_f32 v48, 0, v48")
finish_ln(44, 48, 45, 46, 47)
normalize8(36, 52, 45, 46, 64)
for m in range(2):
    for t in range(4):
        e(f"v_mfma_f32_16x16x32_bf16 {vr(64 + 16*m + 4*t, 4)}, v[52:55], {vr(FF + 16*m + 4*t, 4)}, 0")
e("v_lshlrev_b32 v42, 7, v2")
e("v_lshl_add_u32 v42, v3, 5, v42")
e(f"s_lshl_b32 s{S_T0}, s{S_T2}, 9")
e(f"v_add_u32 v43, s{S_T0}, v42")
for m in range(2):
    for t in range(4):
        a = 64 + 16 * m + 4 * t
        dpp("v_add_f32", 96 + 4 * m + t, a + 1, a, "row_shl:4")
for q in (2, 3):
    for m in range(2):
        for t in range(4):
            a = 64 + 16 * m + 4 * t
            dpp("v_add_f32", 96 + 4 * m + t, a + q, 96 + 4 * m + t, f"row_shl:{4*q}")
e(f"s_mov_b64 exec, s[{S_M3}:{S_M3+1}]")
e(f"ds_write_b128 v43, v[96:99] offset:{L_RED}")
e(f"ds_write_b128 v43, v[100:103] offset:{L_RED+16}")
e("s_waitcnt lgkmcnt(0)")
e("s_barrier")
e(f"s_cmp_lg_u32 s{S_T2}, 0")
e("s_cbranch_scc1 L_WEXIT")
for w in range(4):
    e(f"ds_read_b128 {vr(64+8*w,4)}, v42 offset:{L_RED + 512*w}")
    e(f"ds_read_b128 {vr(68+8*w,4)}, v42 offset:{L_RED + 512*w + 16}")
e("s_waitcnt lgkmcnt(0)")
for k in range(4):
    e(f"v_pk_add_f32 {vr(64+2*k,2)}, {vr(64+2*k,2)}, {vr(72+2*k,2)}")
    e(f"v_pk_add_f32 {vr(80+2*k,2)}, {vr(80+2*k,2)}, {vr(88+2*k,2)}")
for k in range(4):
    e(f"v_pk_add_f32 {vr(64+2*k,2)}, {vr(64+2*k,2)}, {vr(80+2*k,2)}")
for k in range(4):
    e(f"v_cvt_pk_bf16_f32 v{72+k}, v{64+2*k}, v{64+2*k+1}")
for k in range(4):
    e(f"v_lshlrev_b32 v{64+2*k}, 16, v{72+k}")
    e(f"v_and_b32 v{64+2*k+1}, 0xffff0000, v{72+k}")
for k in range(4):
    e(f"v_mul_f32 v{64+k}, v{64+k}, v{68+k}")
e("v_cvt_pk_bf16_f32 v72, v64, v65")
e("v_cvt_pk_bf16_f32 v73, v66, v67")
e(f"buffer_store_dwordx2 v[72:73], v10, {srd(SRD_WS)}, s{S_T4} offen sc1")
stamp(9)
e("s_branch L_WEXIT")

A.label("L_RSTAGE")
e(f"s_lshl_b32 s{S_ROLE}, s{S_XCD}, 2")
e(f"s_add_u32 s{S_ROLE}, s{S_ROLE}, s{S_SLOT}")
e(f"s_sub_u32 s{S_ROLE}, s{S_ROLE}, 11")
e(f"s_lshl_b32 s{S_T0}, s{S_ROLE}, 5")
e(f"s_add_u32 s{SRD_A}, s{S_WD}, s{S_T0}")
e(f"s_addc_u32 s{SRD_A+1}, s{S_WD+1}, 0")
e(f"s_sub_u32 s{SRD_A+2}, {1376*1024}, s{S_T0}")
e(f"s_mov_b32 s{SRD_A+3}, 0x00020000")
e("v_lshlrev_b32 v8, 15, v6")
e("v_lshl_add_u32 v8, v2, 13, v8")
e("v_lshl_add_u32 v8, v7, 3, v8")
e(f"s_lshl_b32 s{S_T1}, s{S_T2}, 17")
e(f"v_add_u32 v8, s{S_T1}, v8")
e("v_add_u32 v9, 0x80000, v8")
e("v_add_u32 v10, 0x100000, v8")
RW, RF = 72, 120


def r_loads(lo, hi):
    e(f"s_mov_b32 s{S_T0}, 4096")
    for idx in range(lo, hi):
        n, ee = idx >> 3, idx & 7
        so = "0" if ee < 4 else f"s{S_T0}"
        e(f"buffer_load_dwordx2 {vr(RW + 16*n + 2*ee, 2)}, v{8+n}, {srd(SRD_A)}, {so} offen offset:{(ee&3)*1024}{WNT}")


e("v_lshrrev_b32 v11, 1, v2")
e("v_lshl_add_u32 v11, v7, 1, v11")
e(f"s_lshl_b32 s{S_T1}, s{S_T2}, 3")
e(f"v_add_u32 v11, s{S_T1}, v11")
e("v_and_b32 v16, 1, v2")
e("v_lshlrev_b32 v16, 6, v16")
e("v_lshl_add_u32 v16, v6, 4, v16")
for n in range(3):
    e(f"v_add_u32 v{12+n}, {32*n}, v11")
    e(f"v_min_u32 v{12+n}, 85, v{12+n}")
    e(f"v_lshl_add_u32 v{12+n}, v{12+n}, 7, v16")
e("v_and_b32 v17, 1, v7")
e("v_lshlrev_b32 v17, 10, v17")
e("v_lshrrev_b32 v18, 1, v7")
e("v_lshl_add_u32 v17, v18, 8, v17")
e("v_lshl_add_u32 v17, v2, 6, v17")
e(f"s_lshl_b32 s{S_T4}, s{S_XCD}, 13")
e(f"s_lshr_b32 s{S_T1}, s{S_ROLE}, 3")
e(f"s_lshl_b32 s{S_T1}, s{S_T1}, 11")
e(f"s_add_u32 s{S_T4}, s{S_T4}, s{S_T1}")
e(f"s_and_b32 s{S_T1}, s{S_ROLE}, 1")
e(f"s_lshl_b32 s{S_T1}, s{S_T1}, 9")
e(f"s_add_u32 s{S_T4}, s{S_T4}, s{S_T1}")
e(f"s_bfe_u32 s{S_T1}, s{S_ROLE}, 0x20001")
e(f"s_lshl_b32 s{S_T1}, s{S_T1}, 4")
e(f"s_add_u32 s{S_T4}, s{S_T4}, s{S_T1}")
e(f"s_add_u32 s{S_T4}, s{S_T4}, {G_HB if OPT['mcp_hh'] else G_HA}")
e(f"s_mov_b32 s{S_T3}, {G_HH}")
for k in range(4):
    e(f"v_mov_b32 v{20+k}, -1")
for n in range(3):
    e(f"buffer_store_dwordx4 v[20:23], v{12+n}, {srd(SRD_WS)}, s{S_T3} offen sc1")
HH_IT = [dict(D=36+4*n, keep=24+4*n, kind="poison",
              load="buffer_load_dwordx4 {D}, v%d, " % (12+n) + f"{srd(SRD_WS)}, s{S_T3} offen sc1") for n in range(3)]
HH_IT.append(dict(D=48, keep=20, kind="tag16", load="buffer_load_dwordx4 {D}, v17, " + f"{srd(SRD_WS)}, s{S_T4} offen sc1"))
if OPT["mcp_hh"]:
    mcp_init(HH_IT)
    e("v_mov_b32 v19, 0xffff")
    e(f"s_cmp_eq_u32 s{S_T2}, 0")
    e(f"s_cselect_b64 s[{MASKS[3]}:{MASKS[3]+1}], -1, 0")
e("s_waitcnt vmcnt(0)")
stamp(4)
e("s_barrier")
stamp(5)
r_loads(0, OPT["r_pre"])
if OPT["r_pre"] < 24:
    if OPT["r_at"] == 1:
        lds_wait(F_O, 4, 4, 20)
    if OPT["r_at"] == 2:
        lds_wait(F_T1, 1, 4, 20)
    r_loads(OPT["r_pre"], 24)
stamp(6)
e("s_waitcnt vmcnt(0)")
for n in range(3):
    for t in range(4):
        for d in range(4):
            lo = RW + 16 * n + 2 * (2 * d) + (t >> 1)
            hi = RW + 16 * n + 2 * (2 * d + 1) + (t >> 1)
            e(f"v_perm_b32 v{RF + 16*n + 4*t + d}, v{hi}, v{lo}, s{S_SELH if t & 1 else S_SELL}")
stamp(7)


def chk_hres():
    e(f"v_xor_b32 v24, s{S_T16L}, v20")
    for k in range(1, 4):
        e(f"v_bitop3_b32 v24, v24, v{20+k}, s{S_T16H if k & 1 else S_T16L} bitop3:0xf6")
    e("v_and_b32 v24, 0xffff, v24")
    e("v_cmp_ne_u32 vcc, 0, v24")


if not OPT["mcp_hh"]:
    gpoll_local([f"buffer_load_dwordx4 v[20:23], v17, {srd(SRD_WS)}, s{S_T4} offen sc1"], chk_hres, S_T4, G_HB - G_HA)
stamp(8)


def hh_loads(i):
    r = 24 + 12 * i
    return [f"buffer_load_dwordx4 {vr(r+4*n,4)}, v{12+n}, {srd(SRD_WS)}, s{S_T3} offen sc1" for n in range(3)]


def hh_check(i):
    r = 24 + 12 * i
    e(f"v_max3_u32 v18, v{r}, v{r+1}, v{r+2}")
    for k in range(3, 11, 2):
        e(f"v_max3_u32 v18, v18, v{r+k}, v{r+k+1}")
    e(f"v_max_u32 v18, v18, v{r+11}")
    e("v_cmp_eq_u32 vcc, -1, v18")


RD = 72


def hh_done(i):
    r = 24 + 12 * i
    for n in range(3):
        for t in range(4):
            c = "0" if n == 0 else vr(RD + 4 * t, 4)
            e(f"v_mfma_f32_16x16x32_bf16 {vr(RD + 4*t, 4)}, {vr(r+4*n,4)}, {vr(RF + 16*n + 4*t, 4)}, {c}")


if OPT["mcp_hh"]:
    mcp(HH_IT, OPT["bhh"], {"tag16": 19}, 18, skip_mask_init=(3,))
    hh_done(0)
else:
    gpoll_pipe(OPT["hpipe"], hh_loads, hh_check, hh_done, "L_HHD")
stamp(9)
e("v_lshlrev_b32 v88, 6, v2")
e("v_lshl_add_u32 v88, v3, 4, v88")
e(f"s_lshl_b32 s{S_T0}, s{S_T2}, 8")
e(f"v_add_u32 v89, s{S_T0}, v88")
for t in range(4):
    dpp("v_add_f32", 96 + t, RD + 4 * t + 1, RD + 4 * t, "row_shl:4")
for q in (2, 3):
    for t in range(4):
        dpp("v_add_f32", 96 + t, RD + 4 * t + q, 96 + t, f"row_shl:{4*q}")
e(f"s_mov_b64 exec, s[{S_M3}:{S_M3+1}]")
e(f"ds_write_b128 v89, v[96:99] offset:{L_RED}")
e("s_waitcnt lgkmcnt(0)")
e("s_barrier")
e(f"s_cmp_lg_u32 s{S_T2}, 0")
e("s_cbranch_scc1 L_WEXIT")
for w in range(4):
    e(f"ds_read_b128 {vr(100+4*w,4)}, v88 offset:{L_RED + 256*w}")
e(f"s_mov_b32 s{SRD_B}, s{S_OUT}")
e(f"s_mov_b32 s{SRD_B+1}, s{S_OUT+1}")
e(f"s_mov_b32 s{SRD_B+2}, 4096")
e(f"s_mov_b32 s{SRD_B+3}, 0x00020000")
e("v_lshlrev_b32 v90, 10, v2")
e("v_lshl_add_u32 v90, v3, 3, v90")
e(f"s_lshl_b32 s{S_T0}, s{S_ROLE}, 5")
for k in range(4):
    e(f"v_and_b32 v{116+k}, 0xffff0000, v{20+k}")
e("s_waitcnt lgkmcnt(0)")
e("v_pk_add_f32 v[100:101], v[100:101], v[104:105]")
e("v_pk_add_f32 v[102:103], v[102:103], v[106:107]")
e("v_pk_add_f32 v[108:109], v[108:109], v[112:113]")
e("v_pk_add_f32 v[110:111], v[110:111], v[114:115]")
e("v_pk_add_f32 v[100:101], v[100:101], v[108:109]")
e("v_pk_add_f32 v[102:103], v[102:103], v[110:111]")
e("v_cvt_pk_bf16_f32 v104, v100, v101")
e("v_cvt_pk_bf16_f32 v105, v102, v103")
for k in range(2):
    e(f"v_lshlrev_b32 v{100+2*k}, 16, v{104+k}")
    e(f"v_and_b32 v{101+2*k}, 0xffff0000, v{104+k}")
e("v_pk_add_f32 v[100:101], v[100:101], v[116:117]")
e("v_pk_add_f32 v[102:103], v[102:103], v[118:119]")
e("v_cvt_pk_bf16_f32 v104, v100, v101")
e("v_cvt_pk_bf16_f32 v105, v102, v103")
e(f"buffer_store_dwordx2 v[104:105], v90, {srd(SRD_B)}, s{S_T0} offen")
e(f"s_cmp_lg_u32 s{S_ROLE}, 0")
e("s_cbranch_scc1 L_RDONE")
e(f"s_add_u32 s{S_T0}, s{S_EP}, 1")
e(f"v_mov_b32 v91, s{S_T0}")
e("s_mov_b64 exec, 1")
e(f"buffer_store_dword v91, v4, {srd(SRD_WS)}, 0 offen")
A.label("L_RDONE")
stamp(10)
A.label("L_WEXIT")
e("s_mov_b64 exec, -1")
wave_exit()
A.label("L_END")
e("s_endpgm")
A.label("L_CODE_END")

body, nn = A.finish()
hdr = open("cdna_kernels/" + NAME + ".s.ref").read().split("\n")
out = []
for l in hdr:
    if l.startswith("; @launch"):
        out.append(f"; @launch grid=(256,1,1) block=(768,1,1) lds={LDS_BYTES}")
        continue
    out.append(l)
    if l.startswith(NAME + "_kernel:"):
        break
out += body
tail = hdr[hdr.index("s_endpgm") + 1:] if "s_endpgm" in hdr else None
for l in tail:
    if ".amdhsa_next_free_vgpr" in l:
        l = f"  .amdhsa_next_free_vgpr {NVGPR}"
    if ".amdhsa_accum_offset" in l:
        l = f"  .amdhsa_accum_offset {NVGPR}"
    out.append(l)
open(sys.argv[1], "w").write("\n".join(out) + "\n")
print(f"wrote {sys.argv[1]}: {len(body)} lines, {nn} nop states inserted")
```
